```python
import torch

def _softmax(x, axis=-1):
    return torch.softmax(x, dim=axis)
def _gelu(x):
    return torch.nn.functional.gelu(x, approximate="tanh")
def _silu(x):
    return torch.nn.functional.silu(x)
def _sigmoid(x):
    return torch.sigmoid(x)
def _layernorm(x, axis=-1, eps=1e-5):
    m = x.mean(dim=axis, keepdim=True)
    v = x.var(dim=axis, keepdim=True, unbiased=False)
    return (x - m) / torch.sqrt(v + eps)
def _scatter_add(tgt, idx, src, axis=0):
    return tgt.clone().index_add_(axis, idx, src)
def _segment_sum(src, seg, n):
    out = torch.zeros((n,) + src.shape[1:], dtype=src.dtype)
    return out.index_add_(0, seg, src)
def _pad(x, pw):
    flat = tuple(v for pair in reversed(pw) for v in pair)
    return torch.nn.functional.pad(x, flat)

kernel_name = 'recurrent_scan__sliding_block_cached__glu_gated_reglu__prompt'

def setup_inputs():

    _w = (lambda a: (lambda t: t.to(torch.bfloat16) if t.is_floating_point() else t)(torch.as_tensor(a)))
    def _A_setup():
        B, Sq, D = 1, 2048, 512
        Hq, Hkv, Sk, Dh = 32, 8, 2048, 128
        assert Hq % Hkv == 0, (Hq, Hkv)
        return {
            "x": _w((lambda *s: torch.randn(*s, dtype=torch.bfloat16) * 0.05)(B, Sq, D)),
            "k_cache": _w((lambda *s: torch.randn(*s, dtype=torch.bfloat16) * 1.6)(B, Hkv, Sk, Dh)),
            "v_cache": _w((lambda *s: torch.randn(*s, dtype=torch.bfloat16) * 1.6)(B, Hkv, Sk, Dh)),
            "wq": _w((lambda *s: torch.randn(*s, dtype=torch.bfloat16) * 1.6)(D, Hq * Dh) * (D ** -0.5)),
            "wo": _w((lambda *s: torch.randn(*s, dtype=torch.bfloat16) * 1.6)(Hq * Dh, D) * ((Hq * Dh) ** -0.5)),
        }
    _A_in = _A_setup()

    def _B_setup():
        B, S, D, F = 1, 2048, 512, 1792
        return {
            "x": _w((lambda *s: torch.randn(*s, dtype=torch.bfloat16) * 0.05)(B, S, D)),
            "W_gate": _w((lambda *s: torch.randn(*s, dtype=torch.bfloat16) * 0.2)(D, F) * (2.0 / D) ** 0.5),
            "W_up": _w((lambda *s: torch.randn(*s, dtype=torch.bfloat16) * 0.2)(D, F) * (2.0 / D) ** 0.5),
            "W_down": _w((lambda *s: torch.randn(*s, dtype=torch.bfloat16) * 0.2)(F, D) * (1.0 / F) ** 0.5),
        }
    _B_in = _B_setup()

    return {
        "A_x": _A_in["x"],
        "A_k_cache": _A_in["k_cache"],
        "A_v_cache": _A_in["v_cache"],
        "A_wq": _A_in["wq"],
        "A_wo": _A_in["wo"],
        "B_x": _B_in["x"],
        "B_W_gate": _B_in["W_gate"],
        "B_W_up": _B_in["W_up"],
        "B_W_down": _B_in["W_down"],
    }

def reference(A_x, A_k_cache, A_v_cache, A_wq, A_wo, B_x, B_W_gate, B_W_up, B_W_down):
    def _A_ref(x, k_cache, v_cache, wq, wo):
        B, Sq, D = x.shape
        Hq, Dh = 32, 128
        Hkv, Sk = k_cache.shape[1], k_cache.shape[2]
        W = min(4096, max(256, Sk // 4))
        rep = Hq // Hkv
        q = (lambda x, *d: x.permute(*d))((x @ wq).reshape(B, Sq, Hq, Dh), 0, 2, 1, 3)
        k = (lambda x, n, axis: torch.repeat_interleave(x, n, dim=axis))(k_cache[:, :, Sk - W:, :], rep, axis=1)
        v = (lambda x, n, axis: torch.repeat_interleave(x, n, dim=axis))(v_cache[:, :, Sk - W:, :], rep, axis=1)
        scores = torch.einsum("bhqd,bhkd->bhqk", q, k) * (Dh ** -0.5)
        p = _softmax(scores, axis=-1)
        o = torch.einsum("bhqk,bhkd->bhqd", p, v)
        return (lambda x, *d: x.permute(*d))(o, 0, 2, 1, 3).reshape(B, Sq, Hq * Dh) @ wo

    def _B_ref(x, W_gate, W_up, W_down):
        gate = torch.einsum("bsd,df->bsf", x, W_gate)
        up = torch.einsum("bsd,df->bsf", x, W_up)
        gate = gate * (lambda x, dt: x.to(dt))(gate > 0, gate.dtype)
        h = gate * up
        return torch.einsum("bsf,fd->bsd", h, W_down)

    x = A_x
    xn = _layernorm(x, axis=-1)
    s = _A_ref(xn, A_k_cache, A_v_cache, A_wq, A_wo)
    g = _silu(_B_ref(xn, B_W_gate, B_W_up, B_W_down))
    return x + s * g
```

```python
class R:
    __slots__ = ("f", "i", "n")
    def __init__(self, f, i, n=1):
        self.f, self.i, self.n = f, i, n
    @property
    def t(self):
        if self.n == 1:
            return "%s%d" % (self.f, self.i)
        return "%s[%d:%d]" % (self.f, self.i, self.i + self.n - 1)
    @property
    def regs(self):
        return ["%s%d" % (self.f, self.i + k) for k in range(self.n)]
    def __getitem__(self, k):
        return R(self.f, self.i + k, 1)
    def sub(self, k, n):
        return R(self.f, self.i + k, n)
    def __str__(self):
        return self.t

def V(i, n=1): return R("v", i, n)
def A(i, n=1): return R("a", i, n)
def S(i, n=1): return R("s", i, n)

def txt(x):
    if isinstance(x, R): return x.t
    if isinstance(x, float):
        m = {0.0: "0", 0.5: "0.5", 1.0: "1.0", 2.0: "2.0", 4.0: "4.0", -1.0: "-1.0", -0.5: "-0.5", -2.0: "-2.0", -4.0: "-4.0"}
        if x in m: return m[x]
        import struct
        return "0x%08x" % struct.unpack("<I", struct.pack("<f", x))[0]
    if isinstance(x, int):
        return str(x) if -16 <= x <= 64 else "0x%x" % (x & 0xffffffff)
    return str(x)

def regs_of(*xs):
    out = []
    for x in xs:
        if isinstance(x, R): out += x.regs
        elif isinstance(x, str):
            s = x.lstrip("-")
            if s in ("vcc", "m0", "exec", "scc"): out.append(s)
    return out

TRANS = ("v_exp_f32", "v_log_f32", "v_rcp_f32", "v_rsq_f32", "v_sqrt_f32")

class E:
    def __init__(self):
        self.out = []
        self.pos = 0
        self.lastw = {}
        self.lastC = {}
        self.lastStore = {}
        self.lg = []
        self.vm = []
        self.pend = {}
        self.nid = 0
        self.stats = {"mfma": 0, "nop": 0, "wait": 0, "inst": 0}
    def raw(self, s, count=True):
        self.out.append("  " + s)
        if count:
            self.pos += 1
            self.stats["inst"] += 1
    def label(self, s):
        self.out.append(s + ":")
    def comment(self, s):
        self.out.append("  ; " + s)
    def nop(self, n):
        while n > 0:
            k = min(n, 16)
            self.out.append("  s_nop %d" % (k - 1))
            self.pos += k
            self.stats["nop"] += 1
            n -= k
    def _wait(self, lgid=None, vmid=None):
        parts = []
        if vmid is not None and vmid in self.vm:
            k = self.vm.index(vmid)
            n = len(self.vm) - 1 - k
            parts.append("vmcnt(%d)" % min(n, 63))
            keep = min(n, 63)
            done = self.vm[:len(self.vm) - keep]
            self.vm = self.vm[len(self.vm) - keep:]
            self._clear("vm", done)
        if lgid is not None and lgid in self.lg:
            k = self.lg.index(lgid)
            n = len(self.lg) - 1 - k
            parts.append("lgkmcnt(%d)" % min(n, 15))
            keep = min(n, 15)
            done = self.lg[:len(self.lg) - keep]
            self.lg = self.lg[len(self.lg) - keep:]
            self._clear("lg", done)
        if parts:
            self.raw("s_waitcnt " + " ".join(parts))
            self.stats["wait"] += 1
    def _clear(self, cls, done):
        d = set(done)
        for r in [r for r, (c, i) in self.pend.items() if c == cls and i in d]:
            del self.pend[r]
    def wait_tokens(self, toks):
        live = [t for t in toks if t in self.vm]
        if live:
            self._wait(vmid=max(live, key=self.vm.index))
    def wait_lg_tokens(self, toks):
        live = [t for t in toks if t in self.lg]
        if live:
            self._wait(lgid=max(live, key=self.lg.index))
    def wait_all(self, vm=True, lg=True):
        parts = []
        if vm:
            parts.append("vmcnt(0)"); self._clear("vm", self.vm); self.vm = []
        if lg:
            parts.append("lgkmcnt(0)"); self._clear("lg", self.lg); self.lg = []
        self.raw("s_waitcnt " + " ".join(parts))
    def _need(self, regs, skip_cls=None):
        lgid = vmid = None
        for r in regs:
            if r in self.pend:
                c, i = self.pend[r]
                if c == skip_cls: continue
                if c == "lg":
                    if i in self.lg and (lgid is None or self.lg.index(i) > self.lg.index(lgid)): lgid = i
                else:
                    if i in self.vm and (vmid is None or self.vm.index(i) > self.vm.index(vmid)): vmid = i
        if lgid is not None or vmid is not None:
            self._wait(lgid, vmid)
    def _dist(self, ppos):
        return self.pos - ppos - 1
    def _pad(self, need):
        if need > 0: self.nop(need)
    def _haz(self, kind, defs, uses, srcC=(), mfma_same=None):
        need = 0
        def req(ppos, n):
            nonlocal need
            d = self._dist(ppos)
            if d < n: need = max(need, n - d)
        for r in uses:
            w = self.lastw.get(r)
            if not w: continue
            p, k = w
            if k.startswith("mfma"):
                passes = int(k[4:])
                big = {4: 8, 8: 12}[passes]
                if kind == "mfma":
                    if r in srcC:
                        if mfma_same is not None and mfma_same: pass
                        else: req(p, {4: 6, 8: 10}[passes])
                    else: req(p, big)
                elif kind != "salu": req(p, big)
            elif k in ("valu", "trans"):
                if r[0] in "va" and r != "vcc":
                    if kind == "mfma": req(p, 2)
                    elif kind in ("perm", "dpp"): req(p, 2)
                    elif kind == "rdlane": req(p, 1)
                    elif k == "trans" and kind in ("valu",): req(p, 1)
                    elif k == "trans" and kind in ("lds", "vmem"): req(p, 1)
                else:
                    if kind in ("valu", "trans", "perm", "dpp"): req(p, 2)
                    elif kind == "vmem": req(p, 5)
                    elif kind == "rdlane": req(p, 4)
                    elif kind == "salu": req(p, 2)
            elif k == "salu":
                if r == "m0" and kind == "dma": req(p, 1)
        for r in defs:
            w = self.lastw.get(r)
            if w and w[1].startswith("mfma"):
                passes = int(w[1][4:])
                if kind == "mfma":
                    if not mfma_same: req(w[0], {4: 6, 8: 10}[passes])
                elif kind != "salu": req(w[0], {4: 8, 8: 12}[passes])
            if kind in ("valu", "trans", "perm", "dpp"):
                c = self.lastC.get(r)
                if c: req(c[0], {4: 3, 8: 7}[c[1]])
                s = self.lastStore.get(r)
                if s is not None: req(s, 2)
            elif kind in ("lds", "vmem"):
                s = self.lastStore.get(r)
                if s is not None: req(s, 1)
        self._pad(need)
    def _mark(self, defs, kind):
        for r in defs: self.lastw[r] = (self.pos, kind)
    def ins(self, op, kind, dsts, srcs, suffix="", extra_uses=(), extra_defs=()):
        defs = regs_of(*dsts) + list(extra_defs)
        uses = regs_of(*srcs) + list(extra_uses)
        self._need(defs + uses)
        self._haz(kind, defs, uses)
        self._mark(defs, kind if kind in ("trans", "salu") else ("salu" if kind == "salu" else "valu"))
        self.raw("%s %s%s" % (op, ", ".join(txt(x) for x in list(dsts) + list(srcs)), suffix))
    def valu(self, op, d, *srcs, suffix="", rmw=False):
        kind = "trans" if op in TRANS else "valu"
        self.ins(op, kind, [d], srcs, suffix, extra_uses=regs_of(d) if rmw else ())
    def cmp(self, op, d, a, b):
        self.ins(op, "valu", [d], [a, b])
    def cnd(self, d, a, b, mask="vcc"):
        self.ins("v_cndmask_b32", "valu", [d], [a, b, mask])
    def dpp(self, op, d, a, b, ctrl):
        self.ins(op, "dpp", [d], [a, b], " " + ctrl)
    def perm(self, op, a, b):
        defs = a.regs + b.regs
        self._need(defs); self._haz("perm", defs, defs); self._mark(defs, "valu")
        self.raw("%s %s, %s" % (op, a.t, b.t))
    def rdlane(self, d, a):
        self.ins("v_readfirstlane_b32", "rdlane", [d], [a])
        self._mark(d.regs, "valu")
    def salu(self, op, d, *srcs, suffix=""):
        self.ins(op, "salu", [d] if d is not None else [], srcs, suffix)
    def accread(self, d, a):
        self.ins("v_accvgpr_read_b32", "valu", [d], [a])
    def accwrite(self, a, v):
        self.ins("v_accvgpr_write_b32", "valu", [a], [v])
    def mfma(self, d, a, b, c, shape=32):
        op = "v_mfma_f32_32x32x16_bf16" if shape == 32 else "v_mfma_f32_16x16x32_bf16"
        passes = 8 if shape == 32 else 4
        cregs = c.regs if isinstance(c, R) else []
        uses = a.regs + b.regs + cregs
        defs = d.regs
        self._need(defs + uses)
        same = isinstance(c, R) and c.t == d.t
        self._haz("mfma", defs, uses, srcC=set(cregs), mfma_same=same)
        for r in cregs: self.lastC[r] = (self.pos, passes)
        self._mark(defs, "mfma%d" % passes)
        self.raw("%s %s, %s, %s, %s" % (op, d.t, a.t, b.t, txt(c)))
        self.stats["mfma"] += 1
    def _newid(self):
        self.nid += 1
        return self.nid
    def ds_read(self, op, d, addr, off=0):
        assert 0 <= off < 65536, off
        self._need(addr.regs)
        self._need(d.regs, skip_cls="lg")
        self._haz("lds", d.regs, addr.regs)
        i = self._newid()
        self.raw("%s %s, %s%s" % (op, d.t, addr.t, " offset:%d" % off if off else ""))
        self.lg.append(i)
        for r in d.regs:
            self.pend[r] = ("lg", i)
            self.lastw.pop(r, None)
        return i
    def ds_write(self, op, addr, data, off=0):
        assert 0 <= off < 65536, off
        self._need(addr.regs + data.regs)
        self._haz("lds", [], addr.regs + data.regs)
        i = self._newid()
        self.raw("%s %s, %s%s" % (op, addr.t, data.t, " offset:%d" % off if off else ""))
        self.lg.append(i)
        return i
    def buf_load(self, d, voff, srd, soff=0, off=0, flags=""):
        assert 0 <= off < 4096
        n = d.n
        op = {1: "buffer_load_dword", 2: "buffer_load_dwordx2", 4: "buffer_load_dwordx4"}[n]
        uses = voff.regs + srd.regs + regs_of(soff)
        self._need(uses)
        self._need(d.regs, skip_cls="vm")
        self._haz("vmem", d.regs, uses)
        i = self._newid()
        self.raw("%s %s, %s, %s, %s offen%s%s" % (op, d.t, voff.t, srd.t, txt(soff), " offset:%d" % off if off else "", " " + flags if flags else ""))
        self.vm.append(i)
        for r in d.regs:
            self.pend[r] = ("vm", i)
            self.lastw.pop(r, None)
        return i
    def dma(self, voff, srd, soff=0, off=0, flags=""):
        assert 0 <= off < 4096
        uses = voff.regs + srd.regs + regs_of(soff)
        self._need(uses)
        self._haz("vmem", [], uses)
        self._haz("dma", [], ["m0"])
        i = self._newid()
        self.raw("buffer_load_dwordx4 %s, %s, %s offen%s%s lds" % (voff.t, srd.t, txt(soff), " offset:%d" % off if off else "", " " + flags if flags else ""))
        self.vm.append(i)
        return i
    def buf_store(self, data, voff, srd, soff=0, off=0, flags=""):
        assert 0 <= off < 4096
        n = data.n
        op = {1: "buffer_store_dword", 2: "buffer_store_dwordx2", 4: "buffer_store_dwordx4"}[n]
        uses = data.regs + voff.regs + srd.regs + regs_of(soff)
        self._need(uses)
        self._haz("vmem", [], uses)
        i = self._newid()
        if n >= 3:
            for r in data.regs: self.lastStore[r] = self.pos
        self.raw("%s %s, %s, %s, %s offen%s%s" % (op, data.t, voff.t, srd.t, txt(soff), " offset:%d" % off if off else "", " " + flags if flags else ""))
        self.vm.append(i)
        return i
    def barrier(self):
        self.raw("s_barrier")
    def state(self):
        import copy
        return copy.deepcopy((self.pos, self.lastw, self.lastC, self.lastStore, self.lg, self.vm, self.pend))
    def restore(self, st):
        import copy
        (self.pos, self.lastw, self.lastC, self.lastStore, self.lg, self.vm, self.pend) = copy.deepcopy(st)
    def text(self):
        return "\n".join(self.out) + "\n"
```

```python
import sys, struct, math
from emit import E, V, A, S, R

NAME = "recurrent_scan__sliding_block_cached__glu_gated_reglu__prompt"

LDS_XN   = 0
LDS_H    = 65536
LDS_RING = 98304
LDS_KV   = 32768
KVSLOT   = [32768, 49152, 0, 16384]
WS_D     = 0
WS_S     = 16 << 20
WS_DBG   = 40 << 20
CSCALE   = (128 ** -0.5) * math.log2(math.e)
THR      = float(2 ** 24)

sX, sK, sV, sWQ, sWO, sWG, sWU, sWD, sPD, sPS = [S(4 * i + 4, 4) for i in range(10)]
sG, sRB, sW, sRING, sOFF, sT0, sTHR, sT1, sT2, sOFF2 = [S(44 + i) for i in range(10)]
sONES = S(54)
sKVM  = S(55)
sRET  = S(60, 2)
sSTAMP = 88

vTID, vLANE, vL16, vL16H = V(0), V(1), V(2), V(3)
vTC = [V(4 + i) for i in range(4)]
vTV = [V(8 + i) for i in range(4)]
vK  = [V(12 + i) for i in range(8)]
vDW = [V(20 + i) for i in range(4)]
vDK = [V(24), V(25)]
vDV = V(26)
vST = V(27)
vTN = [V(28 + i) for i in range(4)]
vTF = [V(32 + i) for i in range(4)]
vDG = [V(36), V(37)]
vDU = [V(38), V(39)]
vDQ = [V(40 + i) for i in range(4)]
vHW = V(44)
TMP = 46
def T(i, n=1): return V(TMP + i, n)
QF  = 64
def Qf(u, ks): return V(QF + (u * 8 + ks) * 4, 4)
ACC = 128
def acc(mb, nb): return V(ACC + (mb * 2 + nb) * 16, 16)
def Sb(p, u): return V(128 + (p * 2 + u) * 16, 16)
def NEG(u): return V(192 + u * 16, 16)
def Pf(p, u, kk): return V(224 + ((p * 2 + u) * 2 + kk) * 4, 4)
def Oacc(mb, u): return A((mb * 2 + u) * 16, 16)
def Af(buf, mb): return A(128 + buf * 16 + mb * 4, 4)
def Bf(buf, nb): return A(160 + buf * 8 + nb * 4, 4)
def Kf(ks): return A(192 + 4 * ks, 4)
def Vf(kk, mb): return A(224 + (kk * 4 + mb) * 4, 4)
vL = [V(28), V(29)]
vTS = [V(30), V(31)]
vE = [V(32 + i) for i in range(12)]

class Gen:
    def __init__(self, diag=False, dbg=None):
        self.e = E()
        self.diag = diag
        self.dbg = dbg
        self.nstamp = 0
        self.tiles = {}
    def stamp(self, name):
        if not self.diag: return
        e = self.e
        r = S(sSTAMP - 24 + 2 * self.nstamp, 2) if False else S(62 + 2 * self.nstamp, 2)
        e.comment("stamp " + name)
        e.raw("s_memtime %s" % r.t)
        e.wait_all(vm=False, lg=True)
        self.nstamp += 1
        self.stamp_names = getattr(self, "stamp_names", []) + [name]
    def srd(self, dst, ptr, off_lo, size, off_reg=None):
        e = self.e
        if off_reg is not None:
            e.salu("s_add_u32", dst[0], ptr[0], off_reg)
            e.salu("s_addc_u32", dst[1], ptr[1], 0)
            if off_lo:
                e.salu("s_add_u32", dst[0], dst[0], off_lo)
                e.salu("s_addc_u32", dst[1], dst[1], 0)
        elif off_lo:
            e.salu("s_add_u32", dst[0], ptr[0], off_lo)
            e.salu("s_addc_u32", dst[1], ptr[1], 0)
        else:
            e.salu("s_mov_b32", dst[0], ptr[0])
            e.salu("s_mov_b32", dst[1], ptr[1])
        e.salu("s_mov_b32", dst[2], size)
        e.salu("s_mov_b32", dst[3], 0x20000)

    def prologue(self):
        e = self.e
        e.raw("s_cmp_ge_u32 s2, 256")
        e.raw("s_cbranch_scc1 L_end")
        e.raw("s_load_dwordx16 s[64:79], s[0:1], 0")
        e.raw("s_load_dwordx8 s[80:87], s[0:1], 64")
        e.salu("s_and_b32", sG, S(2), 7)
        e.salu("s_lshr_b32", sRB, S(2), 3)
        e.valu("v_and_b32", vLANE, 63, vTID)
        e.valu("v_lshrrev_b32", T(0), 6, vTID)
        e.rdlane(sW, T(0))
        l = vLANE
        r4, c16, g1, hh, c4 = T(1), T(2), T(3), T(4), T(5)
        e.valu("v_and_b32", c16, 15, l)
        e.valu("v_lshrrev_b32", r4, 4, l)
        e.salu("s_lshl_b32", sT0, sRB, 6)
        e.salu("s_lshl_b32", sT1, sW, 4)
        e.salu("s_add_u32", sT0, sT0, sT1)
        e.valu("v_add_u32", T(6), sT0, c16)
        e.valu("v_lshlrev_b32", T(6), 10, T(6))
        e.valu("v_lshl_add_u32", T(6), r4, 4, T(6))
        e.raw("s_waitcnt lgkmcnt(0)")
        px, pk, pv, pwq, pwo, pwg, pwu = S(64, 2), S(66, 2), S(68, 2), S(70, 2), S(72, 2), S(76, 2), S(78, 2)
        pwd, pout, pdbg, pws = S(80, 2), S(82, 2), S(84, 2), S(86, 2)
        self.srd(sX, px, 0, 2097152)
        for i in range(16):
            e.buf_load(V(128 + 4 * i, 4), T(6), sX, 0, 64 * i)
        e.salu("s_lshl_b32", sT1, sG, 19)
        self.srd(sK, pk, 1536 * 256, 131072, sT1)
        self.srd(sV, pv, 1536 * 256, 131072, sT1)
        self.srd(sWQ, pwq, 0, 4194304)
        e.salu("s_lshl_b32", sT1, sG, 19)
        self.srd(sWO, pwo, 0, 524288, sT1)
        self.srd(sWG, pwg, 0, 1835008)
        self.srd(sWU, pwu, 0, 1835008)
        e.salu("s_mul_i32", sT1, sG, 224 * 1024)
        self.srd(sWD, pwd, 0, 224 * 1024, sT1)
        e.salu("s_lshl_b32", sT1, S(2), 16)
        self.srd(sPD, pws, WS_D, 65536, sT1)
        self.srd(sPS, pws, WS_S, 65536, sT1)
        if self.diag:
            e.salu("s_mov_b32", S(58), pws[0]); e.salu("s_mov_b32", S(59), pws[1])
        e.salu("s_mov_b32", sONES, 0x3f803f80)
        e.salu("s_lshl_b32", sRING, sW, 14)
        e.salu("s_add_u32", sRING, sRING, LDS_RING)
        e.salu("s_mov_b32", sTHR, THR)
        a, b, c = T(7), T(8), T(9)
        e.valu("v_lshlrev_b32", vL16, 4, l)
        e.valu("v_add_u32", vL16H, LDS_H, vL16)
        e.valu("v_lshlrev_b32", a, 2, r4)
        e.valu("v_xor_b32", a, a, c16)
        e.valu("v_lshlrev_b32", a, 4, a)
        e.valu("v_lshl_add_u32", vDV, r4, 8, a)
        e.salu("s_lshl_b32", sT1, sW, 8)
        e.valu("v_lshl_add_u32", b, r4, 10, a)
        e.valu("v_add_u32", vDW[0], sT1, b)
        for p in range(1, 4):
            e.valu("v_add_u32", vDW[p], p * 3072, vDW[0])
        e.salu("s_lshl_b32", sT2, sG, 10)
        e.salu("s_add_u32", sT1, sT1, sT2)
        e.valu("v_lshl_add_u32", b, r4, 13, a)
        e.valu("v_add_u32", vDQ[0], sT1, b)
        for p in range(1, 4):
            e.valu("v_add_u32", vDQ[p], p * (32768 - 1024), vDQ[0])
        e.salu("s_lshl_b32", sT1, sW, 3)
        for p in range(2):
            e.valu("v_add_u32", b, sT1, r4)
            if p: e.valu("v_add_u32", b, 4, b)
            e.valu("v_and_b32", b, 15, b)
            e.valu("v_xor_b32", b, b, c16)
            e.valu("v_lshlrev_b32", b, 4, b)
            e.valu("v_lshl_add_u32", vDK[p], r4, 8, b)
        r8, c8 = T(10), T(11)
        e.valu("v_lshrrev_b32", r8, 3, l)
        e.valu("v_and_b32", c8, 7, l)
        e.valu("v_and_b32", a, 2, r8)
        e.valu("v_xor_b32", a, a, c8)
        e.salu("s_mul_i32", sT1, sG, 448)
        e.salu("s_lshl_b32", sT2, sW, 7)
        e.raw("s_cmp_eq_u32 %s, 3" % sW.t)
        e.raw("s_cselect_b32 %s, 352, %s" % (sT2.t, sT2.t))
        e.salu("s_add_u32", sT1, sT1, sT2)
        e.salu("s_mov_b32", sT2, 3584)
        e.valu("v_mul_lo_u32", b, r8, sT2)
        e.valu("v_add_u32", b, sT1, b)
        e.raw("s_cmp_ge_u32 %s, 2" % sW.t)
        e.raw("s_cselect_b32 %s, 6, 8" % sT2.t)
        big = T(12)
        e.valu("v_mov_b32", big, 0x40000000)
        for (dst, x) in ((vDG, 0), (vDU, 4)):
            e.valu("v_xor_b32", c, x, a)
            e.cmp("v_cmp_gt_u32", "vcc", sT2, c)
            e.valu("v_lshl_add_u32", c, c, 4, b)
            e.cnd(dst[0], big, c)
            e.valu("v_add_u32", dst[1], 8 * 3584 - 1024, dst[0])
        rr = T(13)
        e.valu("v_and_b32", g1, 1, r4)
        e.valu("v_lshrrev_b32", hh, 5, l)
        e.valu("v_bfe_u32", rr, l, 2, 2)
        e.valu("v_and_b32", c4, 3, l)
        e.valu("v_lshl_add_u32", a, hh, 2, rr)
        e.valu("v_lshlrev_b32", a, 8, a)
        e.valu("v_lshl_add_u32", a, g1, 5, a)
        e.valu("v_lshl_add_u32", b, c4, 3, a)
        for mb in range(4):
            e.valu("v_xor_b32", c, mb, rr)
            e.valu("v_lshl_add_u32", c, c, 6, b)
            e.valu("v_add_u32", vTC[mb], sRING, c)
            e.valu("v_add_u32", vTV[mb], LDS_KV, c)
        e.valu("v_lshl_add_u32", a, hh, 3, rr)
        e.valu("v_lshlrev_b32", a, 8, a)
        e.valu("v_lshl_add_u32", a, g1, 5, a)
        e.valu("v_lshrrev_b32", b, 1, c4)
        e.valu("v_and_b32", c, 1, c4)
        e.valu("v_lshl_or_b32", b, c, 1, b)
        e.valu("v_lshl_add_u32", b, b, 3, a)
        for mb in range(4):
            e.valu("v_xor_b32", c, mb, rr)
            e.valu("v_lshl_add_u32", c, c, 6, b)
            e.valu("v_add_u32", vTN[mb], sRING, c)
        e.valu("v_lshl_add_u32", a, hh, 3, rr)
        e.valu("v_lshlrev_b32", a, 7, a)
        e.valu("v_lshl_add_u32", a, g1, 11, a)
        e.valu("v_lshl_add_u32", a, c4, 3, a)
        e.valu("v_lshrrev_b32", b, 1, rr)
        e.valu("v_lshl_or_b32", b, g1, 1, b)
        for mb in range(4):
            e.valu("v_xor_b32", c, mb, b)
            e.valu("v_lshl_add_u32", c, c, 5, a)
            e.valu("v_add_u32", vTF[mb], sRING, c)
        e.valu("v_and_b32", a, 31, l)
        e.valu("v_and_b32", b, 15, l)
        e.valu("v_xor_b32", b, b, hh)
        e.valu("v_lshlrev_b32", b, 4, b)
        e.valu("v_lshlrev_b32", a, 8, a)
        e.valu("v_add_u32", a, LDS_KV, a)
        for ks in range(8):
            e.valu("v_xor_b32", c, ks * 32, b)
            e.valu("v_add_u32", vK[ks], a, c)
        e.salu("s_lshl_b32", sT1, sW, 14)
        e.valu("v_add_u32", vST, sT1, vL16)
        e.salu("s_lshl_b32", sT1, sW, 13)
        e.raw("s_cmp_eq_u32 %s, 3" % sW.t)
        e.raw("s_cselect_b32 %s, %d, %s" % (sT1.t, 11 * 2048, sT1.t))
        e.valu("v_add_u32", vHW, sT1, vL16H)
        xw = T(16)
        e.salu("s_lshr_b32", sT1, sW, 1)
        e.salu("s_lshl_b32", sT1, sT1, 10)
        e.salu("s_and_b32", sT2, sW, 1)
        e.salu("s_lshl_b32", sT2, sT2, 8)
        e.salu("s_add_u32", sT1, sT1, sT2)
        e.valu("v_lshrrev_b32", a, 1, r4)
        e.valu("v_lshlrev_b32", a, 11, a)
        e.valu("v_and_b32", b, 1, r4)
        e.valu("v_lshl_add_u32", a, b, 9, a)
        e.valu("v_lshl_add_u32", a, c16, 4, a)
        e.valu("v_add_u32", xw, sT1, a)
        self.xw = xw
        for t in range(3):
            for th in self.tile_issue(t): th()
        self.layernorm()

    def layernorm(self):
        e = self.e
        x = lambda i: V(128 + 4 * i, 4)
        s1a, s1b, s2a, s2b = T(0), T(1), T(2), T(3)
        for r in (s1a, s1b, s2a, s2b): e.valu("v_mov_b32", r, 0)
        for i in range(16):
            for k in range(4):
                xr = x(i)[k]
                e.valu("v_dot2_f32_bf16", s1a if k & 1 else s1b, xr, sONES, s1a if k & 1 else s1b)
                e.valu("v_dot2_f32_bf16", s2a if k & 1 else s2b, xr, xr, s2a if k & 1 else s2b)
        e.nop(3)
        e.valu("v_add_f32", s1a, s1a, s1b)
        e.valu("v_add_f32", s2a, s2a, s2b)
        e.perm("v_permlane32_swap_b32", s1a, s2a)
        e.valu("v_add_f32", s1a, s1a, s2a)
        e.valu("v_mov_b32", s2a, s1a)
        e.perm("v_permlane16_swap_b32", s1a, s2a)
        e.valu("v_add_f32", s1a, s1a, s2a)
        e.valu("v_mov_b32", s2a, s1a)
        e.perm("v_permlane32_swap_b32", s1a, s2a)
        mean, rstd, shift = T(4), T(5), T(6)
        e.valu("v_mul_f32", mean, 1.0 / 512, s1a)
        e.valu("v_mul_f32", s2a, 1.0 / 512, s2a)
        e.valu("v_fma_f32", s2a, "-" + mean.t, mean, s2a)
        e.e_uses = None
        e.valu("v_max_f32", s2a, 0, s2a)
        e.valu("v_add_f32", s2a, 1e-5, s2a)
        e.valu("v_rsq_f32", rstd, s2a)
        e.valu("v_mul_f32", shift, mean, rstd)
        e.valu("v_sub_f32", shift, 0, shift)
        for i in range(16):
            xi = x(i)
            y = [T(7 + k) for k in range(8)]
            for k in range(4):
                e.valu("v_lshlrev_b32", y[2 * k], 16, xi[k])
                e.valu("v_and_b32", y[2 * k + 1], 0xffff0000, xi[k])
            for k in range(8):
                e.valu("v_fma_f32", y[k], y[k], rstd, shift)
            for k in range(4):
                e.valu("v_cvt_pk_bf16_f32", xi[k], y[2 * k], y[2 * k + 1])
            e.ds_write("ds_write_b128", self.xw, xi, i * 4096)
        e.wait_all(vm=False, lg=True)
        e.barrier()

    def tile_info(self, T_):
        if T_ < 32: return ("F1", T_)
        if T_ < 46: return ("F2", T_ - 32)
        if T_ < 78: return ("Q", T_ - 46)
        if T_ < 110: return ("O", T_ - 78)
        return None
    def tile_issue(self, T_):
        info = self.tile_info(T_)
        if info is None: return []
        e = self.e
        ph, s = info
        slot = T_ % 4
        toks = self.tiles.setdefault(T_, [])
        th = []
        def m0(off): return lambda: e.salu("s_add_u32", "m0", sRING, off)
        def so(v): return lambda: e.salu("s_mov_b32", sOFF, v)
        def d(vo, srd, off): return lambda: toks.append(e.dma(vo, srd, sOFF, off))
        if ph == "F1":
            th += [so(s * 16 * 3584), m0(slot * 4096), d(vDG[0], sWG, 0), d(vDG[1], sWG, 1024),
                   m0(slot * 4096 + 2048), d(vDU[0], sWU, 0), d(vDU[1], sWU, 1024)]
        else:
            srd, va, rs = {"F2": (sWD, vDW, 1024), "Q": (sWQ, vDQ, 8192), "O": (sWO, vDW, 1024)}[ph]
            th += [so(s * 16 * rs), m0(slot * 4096)] + [d(va[p], srd, p * 1024) for p in range(4)]
        return th

    def gemm(self, ph, T0, nsteps, nmb, accf, first_zero=True, issue_limit=None, bg=None):
        e = self.e
        def a_reads(T_, buf):
            slot = T_ % 4
            th = []
            for mb in range(nmb):
                for j in range(2):
                    if ph == "F1": addr, off = vTF[mb], slot * 4096 + j * 512
                    elif ph == "Q": addr, off = vTN[mb], slot * 4096 + j * 1024
                    else: addr, off = vTC[mb], slot * 4096 + j * 2048
                    dst = Af(buf, mb).sub(2 * j, 2)
                    th.append(lambda addr=addr, off=off, dst=dst: e.ds_read("ds_read_b64_tr_b16", dst, addr, off))
            return th
        def b_reads(s, buf):
            th = []
            for nb in range(2):
                if ph in ("F1", "Q"): addr, off = vL16, (2 * s + nb) * 1024
                elif ph == "F2": addr, off = vL16H, (2 * s + nb) * 1024
                else:
                    addr, off = (vL16, (2 * s + nb) * 1024) if s < 16 else (vL16H, (2 * (s - 16) + nb) * 1024)
                th.append(lambda addr=addr, off=off, nb=nb: e.ds_read("ds_read_b128", Bf(buf, nb), addr, off))
            return th
        e.wait_tokens(self.tiles[T0])
        br = b_reads(0, 0); ar = a_reads(T0, 0)
        for th in [ar[0], ar[1], br[0], br[1]] + ar[2:]: th()
        for s in range(nsteps):
            T_ = T0 + s
            buf = s & 1
            fill = []
            if s + 1 < nsteps:
                ar = a_reads(T_ + 1, buf ^ 1); br = b_reads(s + 1, buf ^ 1)
                reads = [ar[0], ar[1], br[0], br[1]] + ar[2:]
                reads[0] = (lambda f=reads[0], T1=T_ + 1: (e.wait_tokens(self.tiles[T1]), f()))
            else: reads = []
            nxt = T_ + 3
            dm = self.tile_issue(nxt) if (issue_limit is None or nxt < issue_limit) else []
            nm = nmb * 2
            gaps = [[] for _ in range(nm)]
            for i, th in enumerate(reads): gaps[min(nm - 1, (i * nm) // max(1, len(reads)))].append(th)
            for i, th in enumerate(dm): gaps[min(nm - 1, (i * nm) // max(1, len(dm)))].append(th)
            k = 0
            for mb in range(nmb):
                for nb in range(2):
                    c = 0 if (s == 0 and first_zero) else accf(mb, nb)
                    e.mfma(accf(mb, nb), Af(buf, mb), Bf(buf, nb), c)
                    for th in gaps[k]: th()
                    if bg: bg(k)
                    k += 1

    def f1_epilogue(self, nmb):
        e = self.e
        for mb in range(nmb):
            for nb in range(2):
                a = acc(mb, nb)
                for k in range(8):
                    e.valu("v_max_f32", a[k], 0, a[k])
                for k in range(8):
                    e.valu("v_mul_f32", a[k], a[k], a[8 + k])
                d = T(0, 4) if (mb * 2 + nb) & 1 else T(4, 4)
                for k in range(4):
                    e.valu("v_cvt_pk_bf16_f32", d[k], a[2 * k], a[2 * k + 1])
                e.ds_write("ds_write_b128", vHW, d, (2 * mb + nb) * 1024)

    def partial_store(self, srd):
        e = self.e
        n = 0
        for mb in range(4):
            for nb in range(2):
                a = acc(mb, nb)
                for q in range(2):
                    d = T(0, 4) if n & 1 else T(4, 4)
                    for k in range(4):
                        e.valu("v_cvt_pk_bf16_f32", d[k], a[8 * q + 2 * k], a[8 * q + 2 * k + 1])
                    idx = (mb * 2 + nb) * 2 + q
                    if idx % 4 == 0: e.salu("s_mov_b32", sOFF2, idx * 1024)
                    e.buf_store(d, vST, srd, sOFF2, (idx % 4) * 1024, "sc1")
                    n += 1

    def q_epilogue(self):
        e = self.e
        e.salu("s_mov_b32", sT0, CSCALE)
        for ks in range(8):
            for u in range(2):
                a = acc(ks >> 1, u)
                o = 8 * (ks & 1)
                for k in range(8):
                    e.valu("v_mul_f32", a[o + k], sT0, a[o + k])
                d = Qf(u, ks)
                for k in range(4):
                    e.valu("v_cvt_pk_bf16_f32", d[k], a[o + 2 * k], a[o + 2 * k + 1])

    def kv_issue(self, kind, t):
        e = self.e
        toks = self.kvtok.setdefault((kind, t), [])
        base = LDS_KV + KVSLOT[t % 4] + (8192 if kind == "V" else 0)
        th = [lambda: e.salu("s_add_u32", "m0", sKVM, base), lambda: e.salu("s_add_u32", sOFF, sT2, t * 8192)]
        for p in range(2):
            vo = vDK[p] if kind == "K" else vDV
            srd = sK if kind == "K" else sV
            th.append(lambda vo=vo, srd=srd, p=p: toks.append(e.dma(vo, srd, sOFF, p * 1024)))
        return th
    def k_reads(self, t):
        e = self.e
        return [(lambda ks=ks: e.ds_read("ds_read_b128", Kf(ks), vK[ks], KVSLOT[t % 4])) for ks in range(8)]
    def v_reads(self, t):
        e = self.e
        th = []
        for kk in range(2):
            for mb in range(4):
                for j in range(2):
                    th.append(lambda kk=kk, mb=mb, j=j: e.ds_read("ds_read_b64_tr_b16", Vf(kk, mb).sub(2 * j, 2), vTV[mb],
                                                                  KVSLOT[t % 4] + 8192 + kk * 4096 + j * 2048))
        return th
    def qk_mfmas(self, t, czero=False):
        e = self.e
        p = t & 1
        th = []
        for ks in range(8):
            for u in range(2):
                c = (0 if czero else NEG(u)) if ks == 0 else Sb(p, u)
                th.append(lambda ks=ks, u=u, c=c: e.mfma(Sb(p, u), Kf(ks), Qf(u, ks), c))
        return th
    def pv_mfmas(self, t):
        e = self.e
        p = t & 1
        th = []
        for kk in range(2):
            for mb in range(4):
                for u in range(2):
                    c = 0 if (t == 0 and kk == 0) else Oacc(mb, u)
                    th.append(lambda kk=kk, mb=mb, u=u, c=c: e.mfma(Oacc(mb, u), Vf(kk, mb), Pf(p, u, kk), c))
        return th
    def sm_ops(self, t, sub=None):
        e = self.e
        p = t & 1
        th = []
        n = 0
        for kk in range(2):
            for u in range(2):
                s = Sb(p, u)
                for k2 in range(4):
                    r0 = 8 * kk + 2 * k2
                    ea, eb = vE[(2 * n) % 12], vE[(2 * n + 1) % 12]
                    n += 1
                    if sub is not None:
                        th.append(lambda s=s, r0=r0, u=u: e.valu("v_sub_f32", s[r0], s[r0], sub[u]))
                        th.append(lambda s=s, r0=r0, u=u: e.valu("v_sub_f32", s[r0 + 1], s[r0 + 1], sub[u]))
                    th.append(lambda s=s, r0=r0, ea=ea: e.valu("v_exp_f32", ea, s[r0]))
                    th.append(lambda s=s, r0=r0, eb=eb: e.valu("v_exp_f32", eb, s[r0 + 1]))
                    first = (kk == 0 and k2 == 0)
                    if first:
                        th.append(lambda ea=ea, eb=eb, u=u: e.valu("v_add_f32", vTS[u], ea, eb))
                    else:
                        th.append(lambda ea=ea, u=u: e.valu("v_add_f32", vTS[u], vTS[u], ea))
                        th.append(lambda eb=eb, u=u: e.valu("v_add_f32", vTS[u], vTS[u], eb))
                    th.append(lambda ea=ea, eb=eb, u=u, kk=kk, k2=k2: e.valu("v_cvt_pk_bf16_f32", Pf(p, u, kk)[k2], ea, eb))
        return self.reorder_sm(th)
    def reorder_sm(self, th):
        return th
    def sm_check(self, t):
        e = self.e
        p = t & 1
        e.valu("v_max_f32", vE[0], vTS[0], vTS[1])
        e.cmp("v_cmp_nge_f32", "vcc", sTHR, vE[0])
        lab = "L_ok_%d" % t
        e.ins("s_cbranch_vccz", "salu", [], [lab], extra_uses=["vcc"])
        e.raw("s_call_b64 %s, L_slow_%d" % (sRET.t, p))
        e.label(lab)
        for u in range(2):
            if t == 0: e.valu("v_mov_b32", vL[u], vTS[u])
            else: e.valu("v_add_f32", vL[u], vL[u], vTS[u])
    def rowmax(self, p, dst):
        e = self.e
        for u in range(2):
            s = Sb(p, u)
            e.valu("v_max3_f32", dst[u], s[0], s[1], s[2])
            for k in range(3, 15, 2):
                e.valu("v_max3_f32", dst[u], dst[u], s[k], s[k + 1])
            e.valu("v_max_f32", dst[u], dst[u], s[15])
        e.perm("v_permlane32_swap_b32", dst[0], dst[1])
        e.valu("v_max_f32", dst[0], dst[0], dst[1])
        e.valu("v_mov_b32", dst[1], dst[0])
        e.perm("v_permlane32_swap_b32", dst[0], dst[1])
    def slow_path(self, p):
        e = self.e
        st = e.state()
        e.label("L_slow_%d" % p)
        e.lastw, e.lastC, e.lastStore, e.pend = {}, {}, {}, {}
        e.lg, e.vm = [], []
        e.raw("s_waitcnt lgkmcnt(0)")
        e.nop(24)
        dl = [vE[0], vE[1]]; al = [vE[2], vE[3]]; tm = vE[4]
        self.rowmax(p, dl)
        for u in range(2):
            e.valu("v_max_f32", dl[u], 0, dl[u])
            e.valu("v_exp_f32", al[u], "-" + dl[u].t)
            for r in range(16):
                e.valu("v_sub_f32", NEG(u)[r], NEG(u)[r], dl[u])
                e.valu("v_sub_f32", Sb(p, u)[r], Sb(p, u)[r], dl[u])
                e.valu("v_sub_f32", Sb(p ^ 1, u)[r], Sb(p ^ 1, u)[r], dl[u])
            e.valu("v_mul_f32", vL[u], vL[u], al[u])
            for mb in range(4):
                for r in range(16):
                    e.accread(tm, Oacc(mb, u)[r])
                    e.valu("v_mul_f32", tm, tm, al[u])
                    e.accwrite(Oacc(mb, u)[r], tm)
        for th in self.sm_ops(p): th()
        e.nop(8)
        e.raw("s_setpc_b64 %s" % sRET.t)
        e.restore(st)

    def attention(self):
        e = self.e
        self.kvtok = {}
        e.salu("s_lshl_b32", sT2, sW, 11)
        e.salu("s_lshl_b32", sKVM, sW, 11)
        return

    def att_prefetch01(self):
        for t in range(2):
            for kind in "KV":
                for th in self.kv_issue(kind, t): th()

    def att_main(self):
        e = self.e
        e.wait_tokens(self.kvtok[("K", 0)] + self.kvtok[("K", 1)] + self.kvtok[("V", 0)] + self.kvtok[("V", 1)])
        e.wait_all(vm=False, lg=True)
        e.barrier()
        for th in self.kv_issue("K", 2) + self.kv_issue("V", 2) + self.kv_issue("K", 3): th()
        for th in self.k_reads(0): th()
        for th in self.qk_mfmas(0, czero=True): th()
        kr = self.k_reads(1)
        for th in kr: th()
        dl = [vE[10], vE[11]]
        q1 = self.qk_mfmas(1, czero=True)
        for th in q1: th()
        self.rowmax(0, dl)
        for u in range(2):
            for r in range(16):
                e.valu("v_sub_f32", NEG(u)[r], 0, dl[u])
        for u in range(2):
            for r in range(16):
                e.valu("v_sub_f32", Sb(0, u)[r], Sb(0, u)[r], dl[u])
        for u in range(2):
            for r in range(16):
                e.valu("v_sub_f32", Sb(1, u)[r], Sb(1, u)[r], dl[u])
        for th in self.v_reads(0): th()
        for th in self.sm_ops(0): th()
        self.sm_check(0)
        otiles = list(range(78, 81))
        for i in range(16):
            e.comment("---- attention iteration %d" % i)
            need = self.kvtok.get(("K", i + 2), []) + self.kvtok.get(("V", i + 1), [])
            e.wait_tokens(need)
            e.barrier()
            mf = self.pv_mfmas(i) + (self.qk_mfmas(i + 2) if i + 2 < 16 else [])
            gaps = [[] for _ in mf]
            ng = len(mf)
            dm = []
            if i + 4 < 16: dm += self.kv_issue("K", i + 4)
            if i + 3 < 16: dm += self.kv_issue("V", i + 3)
            if 8 <= i < 11: dm += self.tile_issue(otiles[i - 8])
            for k, th in enumerate(dm): gaps[min(ng - 1, 1 + (k * (ng - 2)) // max(1, len(dm)))].append(th)
            if i + 2 < 16:
                for k, th in enumerate(self.k_reads(i + 2)): gaps[2 * k].append(th)
            if i + 1 < 16:
                vr = self.v_reads(i + 1)
                if i + 2 < 16:
                    for k, th in enumerate(vr): gaps[16 + k].append(th)
                else:
                    self.tail_vr = vr
                sm = self.sm_ops(i + 1)
                lo = 2
                for k, th in enumerate(sm): gaps[min(ng - 1, lo + (k * (ng - lo)) // len(sm))].append(th)
            for k, m in enumerate(mf):
                m()
                for th in gaps[k]: th()
            if i + 1 < 16 and i + 2 >= 16:
                for th in self.tail_vr: th()
            if i + 1 < 16: self.sm_check(i + 1)

    def att_epilogue(self):
        e = self.e
        e.perm("v_permlane32_swap_b32", vL[0], vL[1])
        e.valu("v_add_f32", vL[0], vL[0], vL[1])
        e.valu("v_mov_b32", vL[1], vL[0])
        e.perm("v_permlane32_swap_b32", vL[0], vL[1])
        for u in range(2): e.valu("v_rcp_f32", vL[u], vL[u])
        ow = vE[0]
        e.salu("s_and_b32", sT0, sW, 1)
        e.salu("s_lshl_b32", sT0, sT0, 14)
        e.salu("s_lshr_b32", sT1, sW, 1)
        e.salu("s_lshl_b32", sT1, sT1, 16)
        e.salu("s_add_u32", sT0, sT0, sT1)
        e.valu("v_add_u32", ow, sT0, vL16)
        n = 0
        for ks in range(8):
            for u in range(2):
                o = Oacc(ks >> 1, u).sub(8 * (ks & 1), 8)
                y = [V(128 + (n & 1) * 8 + k) for k in range(8)]
                d = V(144 + (n & 1) * 4, 4)
                for k in range(8): e.accread(y[k], o[k])
                for k in range(8): e.valu("v_mul_f32", y[k], y[k], vL[u])
                for k in range(4): e.valu("v_cvt_pk_bf16_f32", d[k], y[2 * k], y[2 * k + 1])
                e.ds_write("ds_write_b128", ow, d, (2 * ks + u) * 1024)
                n += 1
        e.wait_all(vm=False, lg=True)
        e.barrier()

    def main_kernel(self):
        e = self.e
        e.label("main_kernel")
        self.prologue()
        self.stamp("ln_done")
        st = e.state(); tiles0 = {k: list(v) for k, v in self.tiles.items()}
        e.raw("s_cmp_ge_u32 %s, 2" % sW.t)
        e.raw("s_cbranch_scc1 L_f1b")
        self.gemm("F1", 0, 32, 4, acc)
        self.f1_epilogue(4)
        e.wait_all(vm=False, lg=True)
        vm_a = len(e.vm)
        e.raw("s_branch L_f1_join")
        st_a = e.state(); tiles_a = self.tiles
        e.restore(st); self.tiles = tiles0
        e.label("L_f1b")
        nid_save = e.nid
        self.gemm("F1", 0, 32, 3, acc)
        self.f1_epilogue(3)
        e.wait_all(vm=False, lg=True)
        assert len(e.vm) == vm_a, (len(e.vm), vm_a)
        e.label("L_f1_join")
        e.lastw, e.lastC, e.lastStore = {}, {}, {}
        e.nop(2)
        e.barrier()
        self.stamp("f1_done")
        self.gemm("F2", 32, 14, 4, acc)
        self.stamp("f2_gemm")
        self.partial_store(sPD)
        self.attention()
        self.stamp("f2_done")
        e.wait_all(vm=False, lg=True)
        e.barrier()
        self.att_prefetch01()
        self.gemm("Q", 46, 32, 4, acc, issue_limit=78)
        self.stamp("q_gemm")
        self.q_epilogue()
        self.stamp("q_done")
        self.att_main()
        self.stamp("att_main")
        self.att_epilogue()
        self.stamp("att_done")
        self.gemm("O", 78, 32, 4, acc)
        self.stamp("o_gemm")
        self.partial_store(sPS)
        e.wait_all(vm=True, lg=True)
        self.stamp("end")
        if self.diag: self.write_stamps()
        e.label("L_end")
        e.raw("s_endpgm")
        self.slow_path(0)
        self.slow_path(1)

    def write_stamps(self):
        e = self.e
        e.salu("s_mov_b32", S(4), S(58)); e.salu("s_mov_b32", S(5), S(59))
        e.salu("s_add_u32", S(4), S(4), WS_DBG); e.salu("s_addc_u32", S(5), S(5), 0)
        e.salu("s_mov_b32", S(6), 1 << 20); e.salu("s_mov_b32", S(7), 0x20000)
        e.salu("s_lshl_b32", sT0, S(2), 2); e.salu("s_add_u32", sT0, sT0, sW); e.salu("s_lshl_b32", sT0, sT0, 7)
        e.valu("v_mov_b32", T(1), sT0)
        for i in range(self.nstamp):
            e.valu("v_mov_b32", T(0), S(62 + 2 * i))
            e.buf_store(T(0), T(1), S(4, 4), 0, 4 * i)
        e.wait_all()

    def final_kernel(self):
        e = self.e = E()
        e.label("final_kernel")
        e.raw("s_cmp_ge_u32 s2, 256")
        e.raw("s_cbranch_scc1 L_fend")
        e.raw("s_load_dwordx2 s[64:65], s[0:1], 0")
        e.raw("s_load_dwordx2 s[66:67], s[0:1], 72")
        e.raw("s_load_dwordx2 s[68:69], s[0:1], 88")
        g, rb, w = S(44), S(45), S(46)
        e.salu("s_and_b32", g, S(2), 7)
        e.salu("s_lshr_b32", rb, S(2), 3)
        l = V(1)
        e.valu("v_and_b32", l, 63, V(0))
        e.valu("v_lshrrev_b32", V(2), 6, V(0))
        e.rdlane(w, V(2))
        e.raw("s_waitcnt lgkmcnt(0)")
        sXo, sOut, sP = S(4, 4), S(8, 4), S(12, 4)
        self.srd(sXo, S(64, 2), 0, 2097152)
        self.srd(sOut, S(66, 2), 0, 2097152)
        e.salu("s_lshl_b32", S(47), rb, 19)
        self.srd(sP, S(68, 2), 0, 32 << 20, S(47))
        e.salu("s_lshr_b32", S(48), g, 1); e.salu("s_lshl_b32", S(48), S(48), 14)
        e.salu("s_and_b32", S(49), g, 1); e.salu("s_lshl_b32", S(49), S(49), 1)
        e.salu("s_and_b32", S(50), w, 1); e.salu("s_add_u32", S(49), S(49), S(50))
        e.salu("s_lshr_b32", S(51), w, 1)
        e.salu("s_lshl_b32", S(52), S(49), 1); e.salu("s_add_u32", S(52), S(52), S(51))
        e.salu("s_lshl_b32", S(52), S(52), 11); e.salu("s_add_u32", S(48), S(48), S(52))
        vo = V(3)
        e.valu("v_lshlrev_b32", vo, 4, l)
        e.valu("v_add_u32", vo, S(48), vo)
        for reg, base in ((0, WS_D), (1, WS_S)):
            for gp in range(8):
                e.salu("s_mov_b32", S(53), base + gp * 65536)
                for q in range(2):
                    e.buf_load(V(64 + ((reg * 8 + gp) * 2 + q) * 4, 4), vo, sP, S(53), q * 1024)
        xo = V(4)
        e.valu("v_and_b32", V(5), 31, l)
        e.salu("s_lshl_b32", S(54), rb, 6); e.salu("s_lshl_b32", S(55), S(51), 5); e.salu("s_add_u32", S(54), S(54), S(55))
        e.valu("v_add_u32", V(5), S(54), V(5))
        e.valu("v_lshlrev_b32", V(5), 10, V(5))
        e.valu("v_lshrrev_b32", V(6), 5, l)
        e.valu("v_lshl_add_u32", V(5), V(6), 4, V(5))
        e.salu("s_lshr_b32", S(54), g, 1); e.salu("s_lshl_b32", S(54), S(54), 8)
        e.salu("s_lshl_b32", S(55), S(49), 6); e.salu("s_add_u32", S(54), S(54), S(55))
        e.valu("v_add_u32", xo, S(54), V(5))
        X = [V(8, 4), V(12, 4)]
        for q in range(2): e.buf_load(X[q], xo, sXo, 0, q * 32)
        e.salu("s_mov_b32", S(56), -math.log2(math.e))
        for q in range(2):
            sums = []
            for reg in range(2):
                accv = [V(16 + reg * 8 + k) for k in range(8)]
                for gp in range(8):
                    src = V(64 + ((reg * 8 + gp) * 2 + q) * 4, 4)
                    for k in range(4):
                        lo, hi = V(32 + 2 * k), V(33 + 2 * k)
                        if gp == 0:
                            e.valu("v_lshlrev_b32", accv[2 * k], 16, src[k])
                            e.valu("v_and_b32", accv[2 * k + 1], 0xffff0000, src[k])
                        else:
                            e.valu("v_lshlrev_b32", lo, 16, src[k])
                            e.valu("v_and_b32", hi, 0xffff0000, src[k])
                            e.valu("v_add_f32", accv[2 * k], accv[2 * k], lo)
                            e.valu("v_add_f32", accv[2 * k + 1], accv[2 * k + 1], hi)
                sums.append(accv)
            d, s = sums
            t = [V(40 + k) for k in range(8)]
            for k in range(8):
                e.valu("v_mul_f32", t[k], S(56), d[k])
                e.valu("v_exp_f32", t[k], t[k])
                e.valu("v_add_f32", t[k], 1.0, t[k])
                e.valu("v_rcp_f32", t[k], t[k])
                e.valu("v_mul_f32", t[k], t[k], d[k])
                e.valu("v_mul_f32", t[k], t[k], s[k])
            for k in range(4): e.perm("v_permlane32_swap_b32", t[k], t[4 + k])
            xr = X[q]
            o = V(48, 4)
            for k in range(4):
                lo, hi = V(32 + 2 * k), V(33 + 2 * k)
                e.valu("v_lshlrev_b32", lo, 16, xr[k])
                e.valu("v_and_b32", hi, 0xffff0000, xr[k])
                e.valu("v_add_f32", lo, lo, t[2 * k])
                e.valu("v_add_f32", hi, hi, t[2 * k + 1])
                e.valu("v_cvt_pk_bf16_f32", o[k], lo, hi)
            e.buf_store(o, xo, sOut, 0, q * 32)
            e.nop(2)
        e.wait_all()
        e.label("L_fend")
        e.raw("s_endpgm")
        return e.text()

def kd(name, vgpr, acc, sgpr=102):
    return """.amdhsa_kernel %s
  .amdhsa_next_free_vgpr %d
  .amdhsa_next_free_sgpr %d
  .amdhsa_accum_offset %d
  .amdhsa_group_segment_fixed_size 0
  .amdhsa_kernarg_size 96
  .amdhsa_user_sgpr_count 2
  .amdhsa_user_sgpr_kernarg_segment_ptr 1
  .amdhsa_system_sgpr_workgroup_id_x 1
  .amdhsa_float_denorm_mode_32 3
.end_amdhsa_kernel
""" % (name, vgpr, sgpr, acc)

HEADER = """; Fused LayerNorm + ReGLU FFN + sliding-window GQA attention + gated residual (gfx950).
; main_kernel : one workgroup per (64-row block, KV group); writes bf16 partial sums to d_ws
; @launch kernel=main_kernel grid=(256,1,1) block=(256,1,1) lds=163840
; @launch kernel=final_kernel grid=(256,1,1) block=(256,1,1) lds=0
.amdgcn_target "amdgcn-amd-amdhsa--gfx950"
.text
"""

def build(diag=False):
    g = Gen(diag=diag)
    g.main_kernel()
    main = g.e.text()
    stats = dict(g.e.stats)
    names = getattr(g, "stamp_names", [])
    fin = g.final_kernel()
    s = HEADER
    s += ".globl main_kernel\n.p2align 8\n.type main_kernel,@function\n".replace("main_kernel", "main_kernel")
    s += main
    s += ".globl final_kernel\n.p2align 8\n.type final_kernel,@function\n" + fin
    s += '.section .rodata,"a"\n.p2align 6\n' + kd("main_kernel", 512, 256) + ".p2align 6\n" + kd("final_kernel", 192, 192)
    return s, stats, names

if __name__ == "__main__":
    diag = "--diag" in sys.argv
    out = [a for a in sys.argv[1:] if not a.startswith("--")]
    s, stats, names = build(diag)
    path = out[0] if out else "cdna_kernels/%s.s" % NAME
    open(path, "w").write(s)
    print(path, len(s), "bytes", stats, names)
```

```python
import sys, struct, math
from collections import deque
from emit import E, V, A, S, R

NAME = "recurrent_scan__sliding_block_cached__glu_gated_reglu__prompt"

LDS_XN   = 0
LDS_H    = 65536
LDS_DUMMY = LDS_H + 28 * 1024
LDS_RING = 98304
LDS_KV   = 32768
def kvslot(t): return (t % 4) * 16384
WS_D, WS_S, WS_DBG = 0, 16 << 20, 40 << 20
CSCALE   = (128 ** -0.5) * math.log2(math.e)
THR      = float(2 ** 24)

sX, sK, sV, sWQ, sWO, sWG, sWU, sWD, sPD, sPS = [S(4 * i + 4, 4) for i in range(10)]
sG, sRB, sW, sRING, sRUN, sT0, sTHR, sT1, sT2, sOFF2 = [S(44 + i) for i in range(10)]
sONES, sKVM, sKO, sVO, sBI, sB2 = S(54), S(55), S(56), S(57), S(58), S(59)
sRET  = S(60, 2)
sR14, sCS = S(62), S(63)
sFO, sSHORT, sROT = S(98), S(99), S(100)
sWSP = S(96, 2)
STAMP0 = 64

vTID, vLANE, vL16, vL16H = V(0), V(1), V(2), V(3)
vTC = [V(4 + i) for i in range(4)]
vTV = [V(8 + i) for i in range(4)]
vK  = [V(12 + i) for i in range(8)]
vDW = [V(20 + i) for i in range(4)]
vDK = [V(24), V(25)]
vDV = V(26)
vST = V(27)
vTN = [V(28 + i) for i in range(4)]
vTF = [V(32 + i) for i in range(4)]
vDG = [V(36), V(37)]
vDU = [V(38), V(39)]
vDQ = [V(40 + i) for i in range(4)]
vHW, vHW3, vB = V(44), V(45), V(0)
vLX = V(63)
TMP = 46
def T(i, n=1): return V(TMP + i, n)
QF  = 64
def Qf(u, ks): return V(QF + (u * 8 + ks) * 4, 4)
def accV(mb, nb): return V(128 + (mb * 2 + nb) * 16, 16)
def accA(mb, nb): return A((mb * 2 + nb) * 16, 16)
def Sb(p, u): return V(128 + (p * 2 + u) * 16, 16)
def NEG(u): return V(192 + u * 16, 16)
def Pf(p, u, kk): return V(224 + ((p * 2 + u) * 2 + kk) * 4, 4)
Oacc = accA
def Af(buf, mb): return A(128 + buf * 16 + mb * 4, 4)
def Bf(buf, nb): return A(160 + buf * 8 + nb * 4, 4)
def Dpk(idx): return A(128 + 4 * idx, 4)
def Kf(ks): return A(192 + 4 * ks, 4)
def Vf(kk, mb): return A(224 + (kk * 4 + mb) * 4, 4)
def Kf1(ks): return A(4 * ks, 4)
vL = [V(28), V(29)]
vTS = [V(30), V(31)]
vE = [V(32 + i) for i in range(12)]
vDL = [V(44), V(45)]

COST = {"exp": 8}

class Task:
    __slots__ = ("f", "c", "k")
    def __init__(self, f, c=4, k="v"): self.f, self.c, self.k = f, c, k
    def __call__(self): self.f()
def TS(f, c=4): return Task(f, c, "s")
def TM(f, c=4): return Task(f, c, "m")
def run_gap(tasks):
    for t in tasks:
        if t.k != "v": t()
    for t in tasks:
        if t.k == "v": t()

class Gen:
    def __init__(self, diag=False, opt=None):
        self.e = E()
        self.diag = diag
        self.o = dict(bg=True, depth=4, rot=True, dstore="sc1", sstore="sc1", rotmul=1, xmap=1)
        if opt: self.o.update(opt)
        self.nstamp = 0
        self.tiles = {}
        self.bg = deque()
        self.stamp_names = []
        self.pst = []
    def stamp(self, name, force=False):
        if not self.diag: return
        mode = self.o.get("stamps", "phase")
        if (mode == "att") != name.startswith("att_it"): return
        e = self.e
        if mode == "att":
            r = S(STAMP0 + 2 * self.nstamp, 2)
            e.raw("s_memtime %s" % r.t)
            self.nstamp += 1
            self.stamp_names.append(name)
            return
        r = S(STAMP0 + 2 * self.nstamp, 2)
        e.comment("stamp " + name)
        e.raw("s_memtime %s" % r.t)
        e.wait_all(vm=False, lg=True)
        self.nstamp += 1
        self.stamp_names.append(name)
    def pstamp(self, name):
        if not self.o.get("pstamp"): return
        e = self.e
        n = len(self.pst)
        e.raw("s_memtime s[88:89]")
        e.raw("s_waitcnt lgkmcnt(0)")
        e.raw("v_mov_b32 v%d, s88" % (240 + n))
        self.pst.append(name)
    def srd(self, dst, ptr, off_lo, size, off_reg=None):
        e = self.e
        if off_reg is not None:
            e.salu("s_add_u32", dst[0], ptr[0], off_reg)
            e.salu("s_addc_u32", dst[1], ptr[1], 0)
            if off_lo:
                e.salu("s_add_u32", dst[0], dst[0], off_lo)
                e.salu("s_addc_u32", dst[1], dst[1], 0)
        elif off_lo:
            e.salu("s_add_u32", dst[0], ptr[0], off_lo)
            e.salu("s_addc_u32", dst[1], ptr[1], 0)
        else:
            e.salu("s_mov_b32", dst[0], ptr[0])
            e.salu("s_mov_b32", dst[1], ptr[1])
        e.salu("s_mov_b32", dst[2], size)
        e.salu("s_mov_b32", dst[3], 0x20000)
    def run_bg(self, budget):
        while self.bg and budget >= self.bg[0].c:
            t = self.bg.popleft(); budget -= t.c; t()
    def flush_bg(self):
        while self.bg: self.bg.popleft()()

    def prologue(self):
        e = self.e
        e.raw("s_cmp_ge_u32 s2, 256")
        e.raw("s_cbranch_scc1 L_end")
        if self.diag:
            e.raw("s_memrealtime s[92:93]")
            e.raw("s_memtime s[94:95]")
        e.raw("s_load_dwordx16 s[64:79], s[0:1], 0")
        e.raw("s_load_dwordx8 s[80:87], s[0:1], 64")
        ng = self.o["xmap"]
        if ng == 1:
            e.salu("s_and_b32", sG, S(2), 7)
            e.salu("s_lshr_b32", sRB, S(2), 3)
        else:
            lg = {2: 1, 4: 2, 8: 3}[ng]
            e.salu("s_and_b32", sT0, S(2), 7)
            e.salu("s_lshr_b32", sT1, S(2), 3)
            e.salu("s_and_b32", sG, sT0, 8 // ng - 1)
            e.salu("s_lshl_b32", sG, sG, lg)
            e.salu("s_and_b32", sT2, sT1, ng - 1)
            e.salu("s_add_u32", sG, sG, sT2)
            e.salu("s_lshr_b32", sRB, sT0, 3 - lg)
            e.salu("s_mul_i32", sRB, sRB, 32 // ng)
            e.salu("s_lshr_b32", sT2, sT1, lg)
            e.salu("s_add_u32", sRB, sRB, sT2)
        e.salu("s_and_b32", sROT, sRB, 32 // ng - 1)
        if ng > 1: e.salu("s_lshl_b32", sROT, sROT, {2: 1, 4: 2, 8: 3}[ng])
        e.valu("v_and_b32", vLANE, 63, vTID)
        e.valu("v_lshrrev_b32", T(0), 6, vTID)
        e.rdlane(sW, T(0))
        l = vLANE
        r4, c16, g1, hh, c4 = T(1), T(2), T(3), T(4), T(5)
        e.valu("v_and_b32", c16, 15, l)
        e.valu("v_lshrrev_b32", r4, 4, l)
        e.salu("s_lshl_b32", sT0, sRB, 6)
        e.salu("s_lshl_b32", sT1, sW, 4)
        e.salu("s_add_u32", sT0, sT0, sT1)
        e.valu("v_lshrrev_b32", T(14), 2, l)
        e.valu("v_and_b32", T(15), 3, l)
        e.valu("v_add_u32", T(6), sT0, T(14))
        e.valu("v_lshlrev_b32", T(6), 10, T(6))
        e.valu("v_lshl_add_u32", T(6), T(15), 4, T(6))
        a, b, c = T(7), T(8), T(9)
        r8, c8, big = T(10), T(11), T(12)
        e.valu("v_lshrrev_b32", r8, 3, l)
        e.valu("v_and_b32", c8, 7, l)
        e.valu("v_and_b32", a, 2, r8)
        e.valu("v_xor_b32", a, a, c8)
        e.salu("s_lshl_b32", sFO, sW, 7)
        e.salu("s_and_b32", sT0, sG, 1)
        e.salu("s_lshl_b32", sT2, sT0, 6)
        e.raw("s_cmp_eq_u32 %s, 0" % sW.t)
        e.raw("s_cselect_b32 %s, 0, %s" % (sT2.t, sT2.t))
        e.salu("s_sub_u32", sFO, sFO, sT2)
        e.salu("s_mul_i32", sT2, sT0, 3)
        e.salu("s_add_u32", sT2, sT2, sW)
        e.raw("s_cmp_eq_u32 %s, 3" % sT2.t)
        e.raw("s_cselect_b32 %s, 1, 0" % sSHORT.t)
        e.raw("s_cmp_eq_u32 %s, 6" % sT2.t)
        e.raw("s_cselect_b32 %s, 0, %s" % (sSHORT.t, sSHORT.t))
        e.salu("s_mul_i32", sT1, sG, 448)
        e.salu("s_add_u32", sT1, sT1, sFO)
        e.salu("s_mov_b32", sT2, 3584)
        e.valu("v_mul_lo_u32", b, r8, sT2)
        e.valu("v_add_u32", b, sT1, b)
        e.raw("s_cmp_eq_u32 %s, 1" % sSHORT.t)
        e.raw("s_cselect_b32 %s, 4, 8" % sT2.t)
        e.valu("v_mov_b32", big, 0x40000000)
        for (dst, x) in ((vDG, 0), (vDU, 4)):
            e.valu("v_xor_b32", c, x, a)
            e.cmp("v_cmp_gt_u32", "vcc", sT2, c)
            e.valu("v_lshl_add_u32", c, c, 4, b)
            e.cnd(dst[0], big, c)
            e.valu("v_add_u32", dst[1], 8 * 3584 - 1024, dst[0])
        e.salu("s_lshl_b32", sRING, sW, 14)
        e.salu("s_add_u32", sRING, sRING, LDS_RING)
        e.raw("s_waitcnt lgkmcnt(0)")
        px, pk, pv, pwq, pwo, pwg, pwu = S(64, 2), S(66, 2), S(68, 2), S(70, 2), S(72, 2), S(76, 2), S(78, 2)
        pwd, pout, pdbg, pws = S(80, 2), S(82, 2), S(84, 2), S(86, 2)
        self.pstamp("karg")
        self.srd(sX, px, 0, 2097152)
        for i in range(16):
            e.buf_load(V(128 + 4 * i, 4), T(6), sX, 0, 64 * i, "nt" if self.o.get("xnt") else "")
        self.pstamp("xload")
        self.srd(sWG, pwg, 0, 1835008)
        self.srd(sWU, pwu, 0, 1835008)
        if not self.o.get("wdelay"):
            for t in range(self.o["depth"]):
                for th in self.tile_issue(t): th()
        self.pstamp("dma0")
        e.salu("s_lshl_b32", sT1, sG, 19)
        self.srd(sK, pk, 1536 * 256, 131072, sT1)
        self.srd(sV, pv, 1536 * 256, 131072, sT1)
        self.srd(sWQ, pwq, 0, 4194304)
        self.srd(sWO, pwo, 0, 524288, sT1)
        e.salu("s_mul_i32", sT1, sG, 224 * 1024)
        self.srd(sWD, pwd, 0, 224 * 1024, sT1)
        e.salu("s_lshl_b32", sT1, sRB, 3)
        e.salu("s_add_u32", sT1, sT1, sG)
        e.salu("s_lshl_b32", sT1, sT1, 16)
        self.srd(sPD, pws, WS_D, 65536, sT1)
        self.srd(sPS, pws, WS_S, 65536, sT1)
        if self.diag:
            e.salu("s_mov_b32", sWSP[0], pws[0]); e.salu("s_mov_b32", sWSP[1], pws[1])
        e.salu("s_mov_b32", sONES, 0x3f803f80)
        e.salu("s_mov_b32", sTHR, THR)
        e.salu("s_mov_b32", sCS, CSCALE)
        if self.o["rot"]:
            e.salu("s_mov_b32", sR14, sROT)
            for lim in (28, 14):
                e.salu("s_sub_u32", sT1, sR14, lim)
                e.raw("s_cmp_ge_u32 %s, %d" % (sR14.t, lim))
                e.raw("s_cselect_b32 %s, %s, %s" % (sR14.t, sT1.t, sR14.t))
        else:
            e.salu("s_mov_b32", sR14, 0)
        e.valu("v_lshlrev_b32", vL16, 4, l)
        e.valu("v_add_u32", vL16H, LDS_H, vL16)
        e.valu("v_lshlrev_b32", a, 2, r4)
        e.valu("v_xor_b32", a, a, c16)
        e.valu("v_lshlrev_b32", a, 4, a)
        e.valu("v_lshl_add_u32", vDV, r4, 8, a)
        e.salu("s_lshl_b32", sT1, sW, 8)
        e.valu("v_lshl_add_u32", b, r4, 10, a)
        e.valu("v_add_u32", vDW[0], sT1, b)
        for p in range(1, 4):
            e.valu("v_add_u32", vDW[p], p * 3072, vDW[0])
        e.salu("s_lshl_b32", sT2, sG, 10)
        e.salu("s_add_u32", sT1, sT1, sT2)
        e.valu("v_lshl_add_u32", b, r4, 13, a)
        e.valu("v_add_u32", vDQ[0], sT1, b)
        for p in range(1, 4):
            e.valu("v_add_u32", vDQ[p], p * (32768 - 1024), vDQ[0])
        e.salu("s_lshl_b32", sT1, sW, 3)
        for p in range(2):
            e.valu("v_add_u32", b, sT1, r4)
            if p: e.valu("v_add_u32", b, 4, b)
            e.valu("v_and_b32", b, 15, b)
            e.valu("v_xor_b32", b, b, c16)
            e.valu("v_lshlrev_b32", b, 4, b)
            e.valu("v_lshl_add_u32", vDK[p], r4, 8, b)
        rr = T(13)
        e.valu("v_and_b32", g1, 1, r4)
        e.valu("v_lshrrev_b32", hh, 5, l)
        e.valu("v_bfe_u32", rr, l, 2, 2)
        e.valu("v_and_b32", c4, 3, l)
        e.valu("v_lshl_add_u32", a, hh, 2, rr)
        e.valu("v_lshlrev_b32", a, 8, a)
        e.valu("v_lshl_add_u32", a, g1, 5, a)
        e.valu("v_lshl_add_u32", b, c4, 3, a)
        for mb in range(4):
            e.valu("v_xor_b32", c, mb, rr)
            e.valu("v_lshl_add_u32", c, c, 6, b)
            e.valu("v_add_u32", vTC[mb], sRING, c)
            e.valu("v_add_u32", vTV[mb], LDS_KV, c)
        e.valu("v_lshl_add_u32", a, hh, 3, rr)
        e.valu("v_lshlrev_b32", a, 8, a)
        e.valu("v_lshl_add_u32", a, g1, 5, a)
        e.valu("v_lshrrev_b32", b, 1, c4)
        e.valu("v_and_b32", c, 1, c4)
        e.valu("v_lshl_or_b32", b, c, 1, b)
        e.valu("v_lshl_add_u32", b, b, 3, a)
        for mb in range(4):
            e.valu("v_xor_b32", c, mb, rr)
            e.valu("v_lshl_add_u32", c, c, 6, b)
            e.valu("v_add_u32", vTN[mb], sRING, c)
        e.valu("v_lshl_add_u32", a, hh, 3, rr)
        e.valu("v_lshlrev_b32", a, 7, a)
        e.valu("v_lshl_add_u32", a, g1, 11, a)
        e.valu("v_lshl_add_u32", a, c4, 3, a)
        e.valu("v_lshrrev_b32", b, 1, rr)
        e.valu("v_lshl_or_b32", b, g1, 1, b)
        for mb in range(4):
            e.valu("v_xor_b32", c, mb, b)
            e.valu("v_lshl_add_u32", c, c, 5, a)
            e.valu("v_add_u32", vTF[mb], sRING, c)
        e.valu("v_and_b32", a, 31, l)
        e.valu("v_and_b32", b, 15, l)
        e.valu("v_xor_b32", b, b, hh)
        e.valu("v_lshlrev_b32", b, 4, b)
        e.valu("v_lshlrev_b32", a, 8, a)
        e.valu("v_add_u32", a, LDS_KV, a)
        for ks in range(8):
            e.valu("v_xor_b32", c, ks * 32, b)
            e.valu("v_add_u32", vK[ks], a, c)
        e.salu("s_lshl_b32", sT1, sW, 14)
        e.valu("v_add_u32", vST, sT1, vL16)
        e.salu("s_lshl_b32", sT1, sFO, 6)
        e.valu("v_add_u32", vHW, sT1, vL16H)
        e.salu("s_add_u32", sT1, sT1, 2 * 2048)
        e.raw("s_cmp_eq_u32 %s, 1" % sSHORT.t)
        e.raw("s_cselect_b32 %s, %d, %s" % (sT1.t, 28 * 1024, sT1.t))
        e.valu("v_add_u32", vHW3, sT1, vL16H)
        xw = T(16)
        e.salu("s_lshr_b32", sT1, sW, 1)
        e.salu("s_lshl_b32", sT1, sT1, 10)
        e.salu("s_and_b32", sT2, sW, 1)
        e.salu("s_lshl_b32", sT2, sT2, 4)
        e.valu("v_lshrrev_b32", a, 2, l)
        e.valu("v_add_u32", a, sT2, a)
        e.valu("v_and_b32", b, 3, l)
        e.valu("v_lshrrev_b32", c, 1, b)
        e.valu("v_and_b32", b, 1, b)
        e.valu("v_lshlrev_b32", xw, 11, c)
        e.valu("v_lshl_add_u32", xw, b, 9, xw)
        e.valu("v_lshlrev_b32", c, 2, c)
        e.valu("v_lshl_or_b32", c, b, 1, c)
        e.valu("v_xor_b32", a, a, c)
        e.valu("v_lshl_add_u32", xw, a, 4, xw)
        e.valu("v_add_u32", xw, sT1, xw)
        e.valu("v_and_b32", a, 31, l)
        e.valu("v_lshlrev_b32", b, 1, hh)
        e.valu("v_xor_b32", a, a, b)
        e.valu("v_lshlrev_b32", a, 4, a)
        e.valu("v_lshl_add_u32", vLX, hh, 9, a)
        self.xw = xw
        self.stamp("addr")
        if self.o.get("pstamp"):
            e.salu("s_lshl_b32", sT0, S(2), 2); e.salu("s_add_u32", sT0, sT0, sW); e.salu("s_lshl_b32", sT0, sT0, 7)
            e.valu("v_mov_b32", T(1), sT0)
            e.salu("s_add_u32", S(88), sWSP[0], WS_DBG); e.salu("s_addc_u32", S(89), sWSP[1], 0)
            e.salu("s_mov_b32", S(90), 1 << 20); e.salu("s_mov_b32", S(91), 0x20000)
            for i in range(len(self.pst)):
                e.buf_store(V(240 + i), T(1), S(88, 4), 0, 4 * (24 + i))
        self.layernorm()

    def layernorm(self):
        e = self.e
        x = lambda i: V(128 + 4 * i, 4)
        s1a, s1b, s2a, s2b = T(0), T(1), T(2), T(3)
        for r in (s1a, s1b, s2a, s2b): e.valu("v_mov_b32", r, 0)
        wd = self.o.get("wdelay")
        for i in range(16):
            if wd and i == wd:
                for t in range(self.o["depth"]):
                    for th in self.tile_issue(t): th()
            for k in range(4):
                xr = x(i)[k]
                e.valu("v_dot2_f32_bf16", s1a if k & 1 else s1b, xr, sONES, s1a if k & 1 else s1b)
                e.valu("v_dot2_f32_bf16", s2a if k & 1 else s2b, xr, xr, s2a if k & 1 else s2b)
        e.nop(3)
        e.valu("v_add_f32", s1a, s1a, s1b)
        e.valu("v_add_f32", s2a, s2a, s2b)
        for ctrl in ("quad_perm:[1,0,3,2] row_mask:0xf bank_mask:0xf", "quad_perm:[2,3,0,1] row_mask:0xf bank_mask:0xf"):
            e.dpp("v_add_f32_dpp", s1b, s1a, s1a, ctrl)
            e.dpp("v_add_f32_dpp", s2b, s2a, s2a, ctrl)
            s1a, s1b, s2a, s2b = s1b, s1a, s2b, s2a
        mean = T(4)
        rstd, shift = T(6, 2), T(8, 2)
        e.valu("v_mul_f32", mean, 1.0 / 512, s1a)
        e.valu("v_mul_f32", s2a, 1.0 / 512, s2a)
        e.valu("v_fma_f32", s2a, "-" + mean.t, mean, s2a)
        e.valu("v_max_f32", s2a, 0, s2a)
        e.valu("v_add_f32", s2a, 1e-5, s2a)
        e.valu("v_rsq_f32", rstd[0], s2a)
        e.valu("v_mul_f32", shift[0], mean, rstd[0])
        e.valu("v_sub_f32", shift[0], 0, shift[0])
        for i in range(16):
            xi = x(i)
            y = V(192 + 8 * (i & 1), 8)
            for k in range(4):
                e.valu("v_lshlrev_b32", y[2 * k], 16, xi[k])
                e.valu("v_and_b32", y[2 * k + 1], 0xffff0000, xi[k])
            for k in range(4):
                e.valu("v_pk_fma_f32", y.sub(2 * k, 2), y.sub(2 * k, 2), rstd, shift, suffix=" op_sel_hi:[1,0,0]")
            for k in range(4):
                e.valu("v_cvt_pk_bf16_f32", xi[k], y[2 * k], y[2 * k + 1])
            e.ds_write("ds_write_b128", self.xw, xi, i * 4096)
        e.wait_all(vm=False, lg=True)
        e.barrier()

    PH = [("F1", 32), ("Q", 32), ("F2", 14), ("O", 32)]
    def tile_info(self, T_):
        t = T_
        for ph, n in self.PH:
            if t < n: return ph, t, n
            t -= n
        return None
    def phase_T0(self, ph):
        t = 0
        for p, n in self.PH:
            if p == ph: return t
            t += n
    def tile_issue(self, T_):
        info = self.tile_info(T_)
        if info is None: return []
        e = self.e
        ph, s, n = info
        slot = T_ % 4
        toks = self.tiles.setdefault(T_, [])
        stride = {"F1": 16 * 3584, "Q": 16 * 8192, "F2": 16 * 1024, "O": 16 * 1024}[ph]
        th = []
        def m0(off): return TS(lambda: e.salu("s_add_u32", "m0", sRING, off))
        def d(vo, srd, off): return TM(lambda: toks.append(e.dma(vo, srd, sRUN, off)), 8)
        if s == 0:
            rot = sR14 if ph == "F2" else sROT
            if self.o["rot"]:
                sh = self.o["rotmul"]
                th.append(TS(lambda: e.salu("s_mul_i32", sRUN, rot, stride)))
            else: th.append(TS(lambda: e.salu("s_mov_b32", sRUN, 0)))
        if ph == "F1":
            th += [m0(slot * 4096), d(vDG[0], sWG, 0), d(vDG[1], sWG, 1024),
                   m0(slot * 4096 + 2048), d(vDU[0], sWU, 0), d(vDU[1], sWU, 1024)]
        else:
            srd, va = {"F2": (sWD, vDW), "Q": (sWQ, vDQ), "O": (sWO, vDW)}[ph]
            th += [m0(slot * 4096)] + [d(va[p], srd, p * 1024) for p in range(4)]
        if s + 1 < n:
            th.append(TS(lambda: e.salu("s_add_u32", sRUN, sRUN, stride)))
            tot = n * stride
            if tot & (tot - 1) == 0:
                th.append(TS(lambda: e.salu("s_and_b32", sRUN, sRUN, tot - 1)))
            else:
                def wrap():
                    e.raw("s_cmp_eq_u32 %s, 0x%x" % (sRUN.t, tot))
                    e.raw("s_cselect_b32 %s, 0, %s" % (sRUN.t, sRUN.t))
                th.append(TS(wrap, 8))
        return th

    def gemm(self, ph, nmb, accf, pre_steps=None, bgbudget=8, issue_limit=None, extra=None, gapx=None):
        e = self.e
        T0 = self.phase_T0(ph)
        n = dict(self.PH)[ph]
        depth = self.o["depth"]
        def a_reads(T_, buf):
            slot = T_ % 4
            th = []
            for mb in range(nmb):
                for j in range(2):
                    if ph == "F1": addr, off = vTF[mb], slot * 4096 + j * 512
                    elif ph == "Q": addr, off = vTN[mb], slot * 4096 + j * 1024
                    else: addr, off = vTC[mb], slot * 4096 + j * 2048
                    dst = Af(buf, mb).sub(2 * j, 2)
                    th.append(TM(lambda addr=addr, off=off, dst=dst: e.ds_read("ds_read_b64_tr_b16", dst, addr, off)))
            return th
        base = vL16H if ph == "F2" else vL16
        swz = ph in ("F1", "Q")
        def b_addr(s):
            th = []
            if s == 0:
                rot = sR14 if ph == "F2" else sROT
                if self.o["rot"]: th.append(TS(lambda: e.salu("s_lshl_b32", sBI, rot, 11)))
                else: th.append(TS(lambda: e.salu("s_mov_b32", sBI, 0)))
                if swz:
                    def ini():
                        e.salu("s_lshr_b32", sB2, sBI, 5)
                        e.salu("s_and_b32", sB2, sB2, 64)
                        e.salu("s_or_b32", sBI, sBI, sB2)
                    th.append(TS(ini, 12))
            else:
                th.append(TS(lambda: e.salu("s_add_u32", sBI, sBI, 2048)))
                if n == 32: th.append(TS(lambda: e.salu("s_and_b32", sBI, sBI, 0xffff)))
                else:
                    def wrap():
                        e.raw("s_cmp_eq_u32 %s, 0x%x" % (sBI.t, n * 2048))
                        e.raw("s_cselect_b32 %s, 0, %s" % (sBI.t, sBI.t))
                    th.append(TS(wrap, 8))
                if swz: th.append(TS(lambda: e.salu("s_xor_b32", sBI, sBI, 64)))
            if swz: th.append(Task(lambda: e.valu("v_xor_b32", vB, sBI, vLX)))
            else: th.append(Task(lambda: e.valu("v_add_u32", vB, sBI, base)))
            return th
        def b_reads(buf):
            return [TM(lambda nb=nb: e.ds_read("ds_read_b128", Bf(buf, nb), vB, nb * 1024)) for nb in range(2)]
        for th in b_addr(0): th()
        e.wait_tokens(self.tiles[T0])
        ar = a_reads(T0, 0); br = b_reads(0)
        for th in [ar[0], ar[1], br[0], br[1]] + ar[2:]: th()
        nm = nmb * 2
        for s in range(n):
            T_ = T0 + s
            buf = s & 1
            gaps = [[] for _ in range(nm)]
            if s + 1 < n:
                ar = a_reads(T_ + 1, buf ^ 1); br = b_reads(buf ^ 1)
                gaps[0] += b_addr(s + 1)
                gaps[0].insert(0, TS(lambda T1=T_ + 1: e.wait_tokens(self.tiles[T1])))
                if nm == 8:
                    plan = [[ar[0], ar[1]], [br[0], br[1]], [ar[2], ar[3]], [ar[4], ar[5]], [ar[6], ar[7]], [], [], []]
                elif nm == 4:
                    plan = [[ar[0], ar[1]], [br[0], br[1]], [ar[2], ar[3]], []]
                else: raise ValueError
                for k in range(nm): gaps[k] += plan[k]
            nxt = T_ + depth
            dm = self.tile_issue(nxt) if (issue_limit is None or nxt < issue_limit) else []
            if extra: dm = dm + extra(s)
            if dm:
                first = 1
                span = nm - first
                tot = sum(t.c for t in dm); accd = 0
                for t in dm:
                    k = first + min(span - 1, int(accd * span / tot))
                    if nm == 8: k = min(nm - 1, max(k, 1))
                    gaps[k].append(t); accd += t.c
            if gapx:
                for kk_, tl in gapx(s).items():
                    if kk_ == 0: gaps[0] = tl + gaps[0]
                    else: gaps[kk_] += tl
            regs = []
            for mb in range(nmb): regs += Af(buf, mb).regs
            for nb in range(2): regs += Bf(buf, nb).regs
            e._need(regs)
            k = 0
            for mb in range(nmb):
                for nb in range(2):
                    c = 0 if s == 0 else accf(mb, nb)
                    e.mfma(accf(mb, nb), Af(buf, mb), Bf(buf, nb), c)
                    used = sum(t.c for t in gaps[k])
                    bgt = []
                    room = min(bgbudget, 24 - used - (4 if k == nm - 1 else 0))
                    has_v = any(t.k == "v" for t in gaps[k])
                    while self.bg and room >= self.bg[0].c:
                        if self.bg[0].k != "v" and (bgt or has_v): break
                        t = self.bg.popleft(); room -= t.c; bgt.append(t)
                    for t in gaps[k]:
                        if t.k != "v": t()
                    for t in bgt:
                        if t.k != "v": t()
                    for t in gaps[k]:
                        if t.k == "v": t()
                    for t in bgt:
                        if t.k == "v": t()
                    k += 1

    def f1_epilogue_tasks(self):
        e = self.e
        th = []
        for mb in range(4):
            for nb in range(2):
                a = accV(mb, nb)
                for k in range(8): th.append(Task(lambda a=a, k=k: e.valu("v_max_f32", a[k], 0, a[k])))
                for k in range(8): th.append(Task(lambda a=a, k=k: e.valu("v_mul_f32", a[k], a[k], a[8 + k])))
                d = T(0, 4) if (mb * 2 + nb) & 1 else T(4, 4)
                for k in range(4): th.append(Task(lambda a=a, k=k, d=d: e.valu("v_cvt_pk_bf16_f32", d[k], a[2 * k], a[2 * k + 1])))
                if mb < 2: th.append(Task(lambda d=d, mb=mb, nb=nb: e.ds_write("ds_write_b128", vHW, d, (2 * mb + nb) * 1024), 16, "w"))
                else: th.append(Task(lambda d=d, mb=mb, nb=nb: e.ds_write("ds_write_b128", vHW3, d, (2 * (mb - 2) + nb) * 1024), 16, "w"))
        return th
    def q_epilogue_tasks(self):
        e = self.e
        th = []
        n = 0
        for ks in range(8):
            for u in range(2):
                a = accA(ks >> 1, u)
                o = 8 * (ks & 1)
                y = [T(8 * (n & 1) + k) for k in range(8)]
                n += 1
                for k in range(8): th.append(Task(lambda a=a, k=k, y=y, o=o: e.accread(y[k], a[o + k])))
                for k in range(8): th.append(Task(lambda k=k, y=y: e.valu("v_mul_f32", y[k], sCS, y[k])))
                d = Qf(u, ks)
                for k in range(4): th.append(Task(lambda k=k, y=y, d=d: e.valu("v_cvt_pk_bf16_f32", d[k], y[2 * k], y[2 * k + 1])))
        return th
    def d_pack_tasks(self, mb):
        e = self.e
        th = []
        for nb in range(2):
            a = accV(mb, nb)
            for q in range(2):
                idx = (mb * 2 + nb) * 2 + q
                for k in range(4):
                    t = V(32 + 4 * (idx & 1) + k)
                    th.append(Task(lambda a=a, q=q, k=k, t=t: e.valu("v_cvt_pk_bf16_f32", t, a[8 * q + 2 * k], a[8 * q + 2 * k + 1])))
                for k in range(4):
                    t = V(32 + 4 * (idx & 1) + k)
                    th.append(Task(lambda idx=idx, k=k, t=t: e.accwrite(Dpk(idx)[k], t)))
        return th
    def d_store_tasks(self, idx):
        e = self.e
        th = []
        if idx % 4 == 0: th.append(TS(lambda: e.salu("s_mov_b32", sOFF2, idx * 1024)))
        th.append(TM(lambda: e.buf_store(Dpk(idx), vST, sPD, sOFF2, (idx % 4) * 1024, self.o["dstore"]), 8))
        return th
    def s_store(self):
        e = self.e
        n = 0
        for mb in range(4):
            for nb in range(2):
                a = accV(mb, nb)
                for q in range(2):
                    d = T(4 * (n % 4), 4)
                    for k in range(4):
                        e.valu("v_cvt_pk_bf16_f32", d[k], a[8 * q + 2 * k], a[8 * q + 2 * k + 1])
                    idx = (mb * 2 + nb) * 2 + q
                    if idx % 4 == 0: e.salu("s_mov_b32", sOFF2, idx * 1024)
                    e.buf_store(d, vST, sPS, sOFF2, (idx % 4) * 1024, self.o["sstore"])
                    n += 1

    def kv_issue(self, kind, t):
        e = self.e
        toks = self.kvtok.setdefault((kind, t), [])
        base = LDS_KV + kvslot(t) + (8192 if kind == "V" else 0)
        so = sKO if kind == "K" else sVO
        th = [TS(lambda: e.salu("s_add_u32", "m0", sKVM, base))]
        for p in range(2):
            vo = vDK[p] if kind == "K" else vDV
            srd = sK if kind == "K" else sV
            th.append(TM(lambda vo=vo, srd=srd, p=p: toks.append(e.dma(vo, srd, so, p * 1024)), 8))
        th.append(TS(lambda: e.salu("s_add_u32", so, so, 8192)))
        th.append(TS(lambda: e.salu("s_and_b32", so, so, 0x1ffff)))
        return th
    def kv_setup(self):
        e = self.e
        self.kvtok = {}
        e.salu("s_lshl_b32", sKVM, sW, 11)
        if self.o["rot"]:
            e.salu("s_lshr_b32", sKO, sROT, 1)
            e.salu("s_lshl_b32", sKO, sKO, 13)
            e.salu("s_add_u32", sKO, sKO, sKVM)
        else:
            e.salu("s_mov_b32", sKO, sKVM)
        e.salu("s_mov_b32", sVO, sKO)
    def k_reads(self, t, kf=Kf):
        e = self.e
        return [TM(lambda ks=ks: e.ds_read("ds_read_b128", kf(ks), vK[ks], kvslot(t))) for ks in range(8)]
    def v_reads(self, t):
        e = self.e
        th = []
        for kk in range(2):
            for mb in range(4):
                for j in range(2):
                    th.append(TM(lambda kk=kk, mb=mb, j=j: e.ds_read("ds_read_b64_tr_b16", Vf(kk, mb).sub(2 * j, 2), vTV[mb],
                                                                       kvslot(t) + 8192 + kk * 4096 + j * 2048)))
        return th
    def qk_mfmas(self, t, czero=False, kf=Kf):
        e = self.e
        p = t & 1
        th = []
        for ks in range(8):
            for u in range(2):
                c = (0 if czero else NEG(u)) if ks == 0 else Sb(p, u)
                th.append(lambda ks=ks, u=u, c=c: e.mfma(Sb(p, u), kf(ks), Qf(u, ks), c))
        return th
    def pv_mfmas(self, t):
        e = self.e
        p = t & 1
        th = []
        for kk in range(2):
            for mb in range(4):
                for u in range(2):
                    c = 0 if (t == 0 and kk == 0) else Oacc(mb, u)
                    th.append(lambda kk=kk, mb=mb, u=u, c=c: e.mfma(Oacc(mb, u), Vf(kk, mb), Pf(p, u, kk), c))
        return th
    def sm_ops(self, t, sub=None, split=False):
        e = self.e
        p = t & 1
        pairs = []
        for kk in range(2):
            for u in range(2):
                for k2 in range(4): pairs.append((kk, u, k2))
        th = []
        def exps(n):
            kk, u, k2 = pairs[n]
            s = Sb(p, u); r0 = 8 * kk + 2 * k2
            ea, eb = vE[(2 * n) % 12], vE[(2 * n + 1) % 12]
            o = []
            if sub is not None:
                o.append(Task(lambda: e.valu("v_sub_f32", s[r0], s[r0], sub[u])))
                o.append(Task(lambda: e.valu("v_sub_f32", s[r0 + 1], s[r0 + 1], sub[u])))
            o.append(Task(lambda: e.valu("v_exp_f32", ea, s[r0]), 8))
            o.append(Task(lambda: e.valu("v_exp_f32", eb, s[r0 + 1]), 8))
            return o
        def post(n):
            kk, u, k2 = pairs[n]
            ea, eb = vE[(2 * n) % 12], vE[(2 * n + 1) % 12]
            o = []
            if kk == 0 and k2 == 0:
                o.append(Task(lambda: e.valu("v_add_f32", vTS[u], ea, eb)))
            else:
                o.append(Task(lambda: e.valu("v_add_f32", vTS[u], vTS[u], ea)))
                o.append(Task(lambda: e.valu("v_add_f32", vTS[u], vTS[u], eb)))
            o.append(Task(lambda: e.valu("v_cvt_pk_bf16_f32", Pf(p, u, kk)[k2], ea, eb)))
            return o
        if split:
            h0 = exps(0)
            for n in range(1, 8): h0 += exps(n) + post(n - 1)
            h0 += post(7)
            h1 = exps(8)
            for n in range(9, 16): h1 += exps(n) + post(n - 1)
            h1 += post(15)
            return h0, h1
        th += exps(0)
        for n in range(1, 16):
            th += exps(n); th += post(n - 1)
        th += post(15)
        return th
    def sm_check(self, t, mid=None):
        e = self.e
        p = t & 1
        e.valu("v_max_f32", vE[0], vTS[0], vTS[1])
        e.cmp("v_cmp_nge_f32", "vcc", sTHR, vE[0])
        if mid: mid()
        lab = "L_ok_%d" % t
        e.ins("s_cbranch_vccz", "salu", [], [lab], extra_uses=["vcc"])
        e.raw("s_call_b64 %s, L_slow_%d" % (sRET.t, p))
        e.label(lab)
    def rowmax(self, p, dst):
        e = self.e
        for u in range(2):
            s = Sb(p, u)
            e.valu("v_max3_f32", dst[u], s[0], s[1], s[2])
            for k in range(3, 15, 2):
                e.valu("v_max3_f32", dst[u], dst[u], s[k], s[k + 1])
            e.valu("v_max_f32", dst[u], dst[u], s[15])
        e.perm("v_permlane32_swap_b32", dst[0], dst[1])
        e.valu("v_max_f32", dst[0], dst[0], dst[1])
        e.valu("v_mov_b32", dst[1], dst[0])
        e.perm("v_permlane32_swap_b32", dst[0], dst[1])
    def slow_path(self, p):
        e = self.e
        st = e.state()
        e.label("L_slow_%d" % p)
        e.lastw, e.lastC, e.lastStore, e.pend = {}, {}, {}, {}
        e.lg, e.vm = [], []
        e.raw("s_waitcnt lgkmcnt(0)")
        e.nop(24)
        dl = [vE[0], vE[1]]; al = [vE[2], vE[3]]; tm = vE[4]
        self.rowmax(p, dl)
        for u in range(2):
            e.valu("v_max_f32", dl[u], 0, dl[u])
            e.valu("v_exp_f32", al[u], "-" + dl[u].t)
            for r in range(16):
                e.valu("v_sub_f32", NEG(u)[r], NEG(u)[r], dl[u])
                e.valu("v_sub_f32", Sb(p, u)[r], Sb(p, u)[r], dl[u])
                e.valu("v_sub_f32", Sb(p ^ 1, u)[r], Sb(p ^ 1, u)[r], dl[u])
            e.valu("v_mul_f32", vL[u], vL[u], al[u])
            for mb in range(4):
                for r in range(16):
                    e.accread(tm, Oacc(mb, u)[r])
                    e.valu("v_mul_f32", tm, tm, al[u])
                    e.accwrite(Oacc(mb, u)[r], tm)
        for th in self.sm_ops(p): th()
        e.nop(8)
        e.raw("s_setpc_b64 %s" % sRET.t)
        e.restore(st)

    def pack(self, mf, fixed, flow, lo=0, cap=24, hi=None):
        ng = len(mf)
        if hi is None: hi = ng - 1
        flow = deque((t if isinstance(t, tuple) else (t, ng + 1)) for t in flow)
        used = [sum(t.c for t in fixed[k]) for k in range(ng)]
        total = sum(t.c for t, _ in flow)
        room = sum(max(0, cap - used[k]) for k in range(lo, hi + 1))
        ratio = total / room if room else 1.0
        target = 0.0; done = 0
        for k in range(ng):
            while flow and flow[0][1] <= k:
                t, _ = flow.popleft(); done += t.c; t()
            mf[k]()
            pre = [t for t in fixed[k] if t.k != "v"]
            post = [t for t in fixed[k] if t.k == "v"]
            got = []
            if lo <= k <= hi:
                r = max(0, cap - used[k])
                target = max(target, done) if ratio > 1 else target
                target += r * min(ratio, 1.0) if ratio <= 1 else r
                while flow and (k == hi or (done + flow[0][0].c <= target + 2 and flow[0][0].c <= r)):
                    if flow[0][0].k != "v" and (got or post): break
                    t, _ = flow.popleft(); done += t.c; r -= t.c; got.append(t)
            for t in pre: t()
            for t in [x for x in got if x.k != "v"]: t()
            for t in post: t()
            for t in [x for x in got if x.k == "v"]: t()
        while flow: flow.popleft()[0]()

    def f2_extra(self):
        e = self.e
        tok = self.kvtok
        kvpre = self.kv_issue("K", 0) + self.kv_issue("V", 0) + self.kv_issue("K", 1) + self.kv_issue("V", 1)
        def extra(s):
            if s < 4: return kvpre[5 * s:5 * s + 5]
            return []
        def gapx(s):
            g = {}
            if s == 10:
                g[0] = [TS(lambda: (e.wait_tokens(tok[("K", 0)] + tok[("K", 1)] + tok[("V", 0)] + tok[("V", 1)]), e.barrier()), 8)]
            if s == 12:
                kr = self.k_reads(0)
                for j in range(8): g.setdefault(5 + j // 3, []).append(kr[j])
            if s == 13:
                g[0] = [TS(lambda: e.barrier())]
                kr = self.k_reads(1, Kf1); vr = self.v_reads(0)
                rd = kr + vr
                for j, t in enumerate(rd): g.setdefault((j * 8) // len(rd), []).append(t)
                dp = self.d_pack_tasks(0)
                for j, t in enumerate(dp): g.setdefault(4 + (j * 4) // len(dp), []).append(t)
            return g
        return extra, gapx

    def iter_fixed(self, i, base, fixed, ng, pend_l, T0):
        e = self.e
        tok = self.kvtok
        need = tok.get(("K", i + 2), []) + tok.get(("V", i + 1), [])
        fixed[base].append(TS(lambda need=need: (e.wait_tokens(need), e.barrier()), 8))
        fixed[base] += pend_l
        dm = []
        if i + 4 < 16: dm += self.kv_issue("K", i + 4)
        if i + 3 < 16: dm += self.kv_issue("V", i + 3)
        dm += self.d_store_tasks(i)
        if 8 <= i < 8 + self.o["depth"]: dm += self.tile_issue(T0 + i - 8)
        full = (ng - base) == 32
        vr = None
        if i + 2 < 16:
            for k, th in enumerate(self.k_reads(i + 2)): fixed[base + 1 + k].append(th)
            kregs = []
            for ks in range(8): kregs += Kf(ks).regs
            fixed[base + 15].append(TS(lambda kregs=kregs: e._need(kregs)))
        if i + 1 < 16:
            vr = self.v_reads(i + 1)
            if full:
                for k, th in enumerate(vr): fixed[base + 16 + (k * 12) // 16].append(th)
                vr = None
        order = [9, 10, 11, 12, 13, 14, 28, 29, 30] if full else list(range(1, 15))
        groups = []; cur = []
        for t in dm:
            cur.append(t)
            if t.k == "m": groups.append(cur); cur = []
        if cur:
            if groups: groups[-1] += cur
            else: groups.append(cur)
        for j, gtasks in enumerate(groups):
            fixed[base + order[min(len(order) - 1, j)]] += gtasks
        return vr

    def att_main(self):
        e = self.e
        tok = self.kvtok
        self.stamp("att_it_start")
        self.flush_bg()
        dl = vDL
        T0 = self.phase_T0("O")
        vregs = []
        for kk in range(2):
            for mb in range(4): vregs += Vf(kk, mb).regs
        mf = self.qk_mfmas(0, czero=True)
        fixed = [[] for _ in mf]
        dm = self.kv_issue("K", 2) + self.kv_issue("V", 2) + self.kv_issue("K", 3)
        for j, t in enumerate(dm): fixed[1 + (j * 14) // len(dm)].append(t)
        self.pack(mf, fixed, self.d_pack_tasks(1) + self.d_pack_tasks(2) + self.d_pack_tasks(3))
        self.stamp("att_it_qk0")
        mf = self.qk_mfmas(1, czero=True, kf=Kf1) + self.pv_mfmas(0) + self.qk_mfmas(2)
        ng = len(mf)
        fixed = [[] for _ in mf]
        fixed[2].append(Task(lambda: self.rowmax(0, dl), 104))
        h0, h1 = self.sm_ops(0, sub=dl, split=True)
        flow = [(t, 16) for t in h0] + [(t, 24) for t in h1]
        flow += [(Task(lambda u=u: e.valu("v_mov_b32", vL[u], vTS[u])), 30) for u in range(2)]
        for u in range(2):
            for r in range(16): flow.append((Task(lambda u=u, r=r: e.valu("v_sub_f32", NEG(u)[r], 0, dl[u])), 32))
        flow += self.sm_ops(1, sub=dl)
        self.iter_fixed(0, 16, fixed, ng, [], T0)
        self.pack(mf, fixed, flow, lo=3, hi=ng - 2)
        self.sm_check(1, mid=lambda: e._need(vregs))
        pend_l = [Task(lambda u=u: e.valu("v_add_f32", vL[u], vL[u], vTS[u])) for u in range(2)]
        for i in range(1, 16):
            e.comment("---- attention iteration %d" % i)
            if i < 13: self.stamp("att_it%d" % i)
            mf = self.pv_mfmas(i) + (self.qk_mfmas(i + 2) if i + 2 < 16 else [])
            ng = len(mf)
            fixed = [[] for _ in mf]
            e._need(vregs)
            vr = self.iter_fixed(i, 0, fixed, ng, pend_l, T0)
            flow = self.sm_ops(i + 1) if i + 1 < 16 else []
            self.pack(mf, fixed, flow, lo=self.o.get("smlo", 1), hi=ng - 2, cap=self.o.get("cap", 24))
            if vr:
                for th in vr: th()
            if i + 1 < 16:
                self.sm_check(i + 1, mid=lambda: e._need(vregs))
                pend_l = [Task(lambda u=u: e.valu("v_add_f32", vL[u], vL[u], vTS[u])) for u in range(2)]
            else: pend_l = []

    def att_epilogue(self):
        e = self.e
        e.perm("v_permlane32_swap_b32", vL[0], vL[1])
        e.valu("v_add_f32", vL[0], vL[0], vL[1])
        e.valu("v_mov_b32", vL[1], vL[0])
        e.perm("v_permlane32_swap_b32", vL[0], vL[1])
        for u in range(2): e.valu("v_rcp_f32", vL[u], vL[u])
        ow = vE[0]
        e.salu("s_lshl_b32", sT0, sW, 14)
        e.valu("v_add_u32", ow, sT0, vL16)
        n = 0
        for ks in range(8):
            for u in range(2):
                o = Oacc(ks >> 1, u).sub(8 * (ks & 1), 8)
                y = [V(128 + (n & 1) * 8 + k) for k in range(8)]
                d = V(144 + (n & 1) * 4, 4)
                for k in range(8): e.accread(y[k], o[k])
                for k in range(8): e.valu("v_mul_f32", y[k], y[k], vL[u])
                for k in range(4): e.valu("v_cvt_pk_bf16_f32", d[k], y[2 * k], y[2 * k + 1])
                e.ds_write("ds_write_b128", ow, d, (2 * ks + u) * 1024)
                n += 1
        e.wait_all(vm=False, lg=True)
        e.barrier()

    def main_kernel(self):
        e = self.e
        e.label("main_kernel")
        self.stamp("start") if False else None
        self.prologue()
        self.stamp("ln_done")
        st = e.state(); tiles0 = {k: list(v) for k, v in self.tiles.items()}
        e.raw("s_cmp_eq_u32 %s, 1" % sSHORT.t)
        e.raw("s_cbranch_scc1 L_f1b")
        self.gemm("F1", 4, accV)
        e.wait_all(vm=False, lg=True)
        vm_a = len(e.vm)
        e.raw("s_branch L_f1_join")
        e.restore(st); self.tiles = tiles0
        e.label("L_f1b")
        self.gemm("F1", 2, accV)
        e.wait_all(vm=False, lg=True)
        assert len(e.vm) == vm_a, (len(e.vm), vm_a)
        e.label("L_f1_join")
        e.lastw, e.lastC, e.lastStore = {}, {}, {}
        e.nop(12)
        self.stamp("f1")
        if self.o["bg"]: self.bg.extend(self.f1_epilogue_tasks())
        else:
            for t in self.f1_epilogue_tasks(): t()
        self.gemm("Q", 4, accA)
        self.flush_bg()
        self.kv_setup()
        self.stamp("q")
        e.wait_all(vm=False, lg=True)
        e.barrier()
        if self.o["bg"]: self.bg.extend(self.q_epilogue_tasks())
        else:
            for t in self.q_epilogue_tasks(): t()
        extra, gapx = self.f2_extra()
        self.gemm("F2", 4, accV, issue_limit=self.phase_T0("O"), extra=extra, gapx=gapx, bgbudget=16)
        self.stamp("f2")
        self.flush_bg()
        self.stamp("f2_flush")
        self.att_main()
        self.stamp("att_main")
        self.att_epilogue()
        self.stamp("att_done")
        self.gemm("O", 4, accV)
        self.stamp("o_gemm")
        self.s_store()
        e.wait_all(vm=True, lg=True)
        self.stamp("end")
        if self.diag: self.write_stamps()
        e.label("L_end")
        e.raw("s_endpgm")
        self.slow_path(0)
        self.slow_path(1)

    def write_stamps(self):
        e = self.e
        e.raw("s_waitcnt lgkmcnt(0)")
        e.salu("s_add_u32", S(4), sWSP[0], WS_DBG); e.salu("s_addc_u32", S(5), sWSP[1], 0)
        e.salu("s_mov_b32", S(6), 1 << 20); e.salu("s_mov_b32", S(7), 0x20000)
        e.salu("s_lshl_b32", sT0, S(2), 2); e.salu("s_add_u32", sT0, sT0, sW); e.salu("s_lshl_b32", sT0, sT0, 7)
        e.valu("v_mov_b32", T(1), sT0)
        for i in range(self.nstamp):
            e.valu("v_mov_b32", T(0), S(STAMP0 + 2 * i))
            e.buf_store(T(0), T(1), S(4, 4), 0, 4 * i)
        e.raw("s_memrealtime s[90:91]")
        e.raw("s_waitcnt lgkmcnt(0)")
        for i, r in enumerate((S(92), S(90), S(94))):
            e.valu("v_mov_b32", T(0), r)
            e.buf_store(T(0), T(1), S(4, 4), 0, 4 * (29 + i))
        e.wait_all()

from gen import Gen as Gen1, kd
HEADER = """; Fused LayerNorm + ReGLU FFN + sliding-window GQA attention + gated residual (gfx950).
; @launch kernel=main_kernel grid=(256,1,1) block=(256,1,1) lds=163840
; @launch kernel=final_kernel grid=(256,1,1) block=(256,1,1) lds=0
.amdgcn_target "amdgcn-amd-amdhsa--gfx950"
.text
"""
def build(diag=False, opt=None):
    g = Gen(diag=diag, opt=opt)
    g.main_kernel()
    main = g.e.text()
    stats = dict(g.e.stats)
    names = g.stamp_names
    fin = Gen1().final_kernel()
    s = HEADER
    s += ".globl main_kernel\n.p2align 8\n.type main_kernel,@function\n" + main
    s += ".globl final_kernel\n.p2align 8\n.type final_kernel,@function\n" + fin
    s += '.section .rodata,"a"\n.p2align 6\n' + kd("main_kernel", 512, 256) + ".p2align 6\n" + kd("final_kernel", 192, 192)
    return s, stats, names

if __name__ == "__main__":
    diag = "--diag" in sys.argv
    opt = {}
    for a in sys.argv[1:]:
        if a.startswith("--") and "=" in a:
            k, v = a[2:].split("=")
            opt[k] = {"True": True, "False": False}.get(v, int(v) if v.lstrip("-").isdigit() else v)
    out = [a for a in sys.argv[1:] if not a.startswith("--")]
    s, stats, names = build(diag, opt)
    path = out[0] if out else "cdna_kernels/%s.s" % NAME
    open(path, "w").write(s)
    print(path, len(s), "bytes", stats, names)
```

```python
import sys, struct, math
from collections import deque
from emit import E, V, A, S, R

NAME = "recurrent_scan__sliding_block_cached__glu_gated_reglu__prompt"

LDS_XN   = 0
LDS_H    = 65536
LDS_DUMMY = LDS_H + 28 * 1024
LDS_RING = 98304
LDS_KV   = 32768
def kvslot(t): return (t % 4) * 16384
WS_D, WS_S, WS_DBG = 0, 16 << 20, 40 << 20
CSCALE   = (128 ** -0.5) * math.log2(math.e)
THR      = float(2 ** 24)

sX, sK, sV, sWQ, sWO, sWG, sWU, sWD, sPD, sPS = [S(4 * i + 4, 4) for i in range(10)]
sG, sRB, sW, sRING, sRUN, sT0, sTHR, sT1, sT2, sOFF2 = [S(44 + i) for i in range(10)]
sONES, sKVM, sKO, sVO, sBI, sB2 = S(54), S(55), S(56), S(57), S(58), S(59)
sRET  = S(60, 2)
sR14, sCS = S(62), S(63)
sFO, sSHORT, sROT = S(98), S(99), S(100)
sWSP = S(96, 2)
STAMP0 = 64

vTID, vLANE, vL16, vL16H = V(0), V(1), V(2), V(3)
vTC = [V(4 + i) for i in range(4)]
vTV = [V(8 + i) for i in range(4)]
vK  = [V(12 + i) for i in range(8)]
vDW = [V(20 + i) for i in range(4)]
vDK = [V(24), V(25)]
vDV = V(26)
vST = V(27)
vTN = [V(28 + i) for i in range(4)]
vTF = [V(32 + i) for i in range(4)]
vDG = [V(36), V(37)]
vDU = [V(38), V(39)]
vDQ = [V(40 + i) for i in range(4)]
vHW, vHW3, vB = V(44), V(45), V(0)
vLX = V(63)
TMP = 46
def T(i, n=1): return V(TMP + i, n)
QF  = 64
def Qf(u, ks): return V(QF + (u * 8 + ks) * 4, 4)
def accV(mb, nb): return V(128 + (mb * 2 + nb) * 16, 16)
def accA(mb, nb): return A((mb * 2 + nb) * 16, 16)
def Sb(p, u): return V(128 + (p * 2 + u) * 16, 16)
def NEG(u): return V(192 + u * 16, 16)
def Pf(p, u, kk): return V(224 + ((p * 2 + u) * 2 + kk) * 4, 4)
Oacc = accA
def Af(buf, mb): return A(128 + buf * 16 + mb * 4, 4)
def Bf(buf, nb): return A(160 + buf * 8 + nb * 4, 4)
def Dpk(idx): return A(128 + 4 * idx, 4)
def Kf(ks): return A(192 + 4 * ks, 4)
def Vf(kk, mb): return A(224 + (kk * 4 + mb) * 4, 4)
def Kf1(ks): return A(4 * ks, 4)
vL = [V(28), V(29)]
vTS = [V(30), V(31)]
vE = [V(32 + i) for i in range(12)]
vDL = [V(44), V(45)]

COST = {"exp": 8}

class Task:
    __slots__ = ("f", "c", "k")
    def __init__(self, f, c=4, k="v"): self.f, self.c, self.k = f, c, k
    def __call__(self): self.f()
def TS(f, c=4): return Task(f, c, "s")
def TM(f, c=4): return Task(f, c, "m")
def run_gap(tasks):
    for t in tasks:
        if t.k != "v": t()
    for t in tasks:
        if t.k == "v": t()

class Gen:
    def __init__(self, diag=False, opt=None):
        self.e = E()
        self.diag = diag
        self.o = dict(bg=True, depth=4, rot=True, dstore="sc1", sstore="sc1", rotmul=1, xmap=1)
        if opt: self.o.update(opt)
        self.nstamp = 0
        self.tiles = {}
        self.bg = deque()
        self.stamp_names = []
        self.pst = []
    def stamp(self, name, force=False):
        if not self.diag: return
        mode = self.o.get("stamps", "phase")
        if (mode == "att") != name.startswith("att_it"): return
        e = self.e
        if mode == "att":
            r = S(STAMP0 + 2 * self.nstamp, 2)
            e.raw("s_memtime %s" % r.t)
            self.nstamp += 1
            self.stamp_names.append(name)
            return
        r = S(STAMP0 + 2 * self.nstamp, 2)
        e.comment("stamp " + name)
        e.raw("s_memtime %s" % r.t)
        e.wait_all(vm=False, lg=True)
        self.nstamp += 1
        self.stamp_names.append(name)
    def pstamp(self, name):
        if not self.o.get("pstamp"): return
        e = self.e
        n = len(self.pst)
        e.raw("s_memtime s[88:89]")
        e.raw("s_waitcnt lgkmcnt(0)")
        e.raw("v_mov_b32 v%d, s88" % (240 + n))
        self.pst.append(name)
    def srd(self, dst, ptr, off_lo, size, off_reg=None):
        e = self.e
        if off_reg is not None:
            e.salu("s_add_u32", dst[0], ptr[0], off_reg)
            e.salu("s_addc_u32", dst[1], ptr[1], 0)
            if off_lo:
                e.salu("s_add_u32", dst[0], dst[0], off_lo)
                e.salu("s_addc_u32", dst[1], dst[1], 0)
        elif off_lo:
            e.salu("s_add_u32", dst[0], ptr[0], off_lo)
            e.salu("s_addc_u32", dst[1], ptr[1], 0)
        else:
            e.salu("s_mov_b32", dst[0], ptr[0])
            e.salu("s_mov_b32", dst[1], ptr[1])
        e.salu("s_mov_b32", dst[2], size)
        e.salu("s_mov_b32", dst[3], 0x20000)
    def run_bg(self, budget):
        while self.bg and budget >= self.bg[0].c:
            t = self.bg.popleft(); budget -= t.c; t()
    def flush_bg(self):
        while self.bg: self.bg.popleft()()

    def prologue(self):
        e = self.e
        e.raw("s_cmp_ge_u32 s2, 256")
        e.raw("s_cbranch_scc1 L_end")
        if self.diag:
            e.raw("s_memrealtime s[92:93]")
            e.raw("s_memtime s[94:95]")
        e.raw("s_load_dwordx16 s[64:79], s[0:1], 0")
        e.raw("s_load_dwordx8 s[80:87], s[0:1], 64")
        ng = self.o["xmap"]
        if ng == 1:
            e.salu("s_and_b32", sG, S(2), 7)
            e.salu("s_lshr_b32", sRB, S(2), 3)
        else:
            lg = {2: 1, 4: 2, 8: 3}[ng]
            e.salu("s_and_b32", sT0, S(2), 7)
            e.salu("s_lshr_b32", sT1, S(2), 3)
            e.salu("s_and_b32", sG, sT0, 8 // ng - 1)
            e.salu("s_lshl_b32", sG, sG, lg)
            e.salu("s_and_b32", sT2, sT1, ng - 1)
            e.salu("s_add_u32", sG, sG, sT2)
            e.salu("s_lshr_b32", sRB, sT0, 3 - lg)
            e.salu("s_mul_i32", sRB, sRB, 32 // ng)
            e.salu("s_lshr_b32", sT2, sT1, lg)
            e.salu("s_add_u32", sRB, sRB, sT2)
        e.salu("s_and_b32", sROT, sRB, 32 // ng - 1)
        if ng > 1: e.salu("s_lshl_b32", sROT, sROT, {2: 1, 4: 2, 8: 3}[ng])
        e.valu("v_and_b32", vLANE, 63, vTID)
        e.valu("v_lshrrev_b32", T(0), 6, vTID)
        e.rdlane(sW, T(0))
        l = vLANE
        r4, c16, g1, hh, c4 = T(1), T(2), T(3), T(4), T(5)
        e.valu("v_and_b32", c16, 15, l)
        e.valu("v_lshrrev_b32", r4, 4, l)
        e.salu("s_lshl_b32", sT0, sRB, 6)
        e.salu("s_lshl_b32", sT1, sW, 4)
        e.salu("s_add_u32", sT0, sT0, sT1)
        e.valu("v_lshrrev_b32", T(14), 2, l)
        e.valu("v_and_b32", T(15), 3, l)
        e.valu("v_add_u32", T(6), sT0, T(14))
        e.valu("v_lshlrev_b32", T(6), 10, T(6))
        e.valu("v_lshl_add_u32", T(6), T(15), 4, T(6))
        a, b, c = T(7), T(8), T(9)
        r8, c8, big = T(10), T(11), T(12)
        e.valu("v_lshrrev_b32", r8, 3, l)
        e.valu("v_and_b32", c8, 7, l)
        e.valu("v_and_b32", a, 2, r8)
        e.valu("v_xor_b32", a, a, c8)
        e.salu("s_lshl_b32", sFO, sW, 7)
        e.salu("s_and_b32", sT0, sG, 1)
        e.salu("s_lshl_b32", sT2, sT0, 6)
        e.raw("s_cmp_eq_u32 %s, 0" % sW.t)
        e.raw("s_cselect_b32 %s, 0, %s" % (sT2.t, sT2.t))
        e.salu("s_sub_u32", sFO, sFO, sT2)
        e.salu("s_mul_i32", sT2, sT0, 3)
        e.salu("s_add_u32", sT2, sT2, sW)
        e.raw("s_cmp_eq_u32 %s, 3" % sT2.t)
        e.raw("s_cselect_b32 %s, 1, 0" % sSHORT.t)
        e.raw("s_cmp_eq_u32 %s, 6" % sT2.t)
        e.raw("s_cselect_b32 %s, 0, %s" % (sSHORT.t, sSHORT.t))
        e.salu("s_mul_i32", sT1, sG, 448)
        e.salu("s_add_u32", sT1, sT1, sFO)
        e.salu("s_mov_b32", sT2, 3584)
        e.valu("v_mul_lo_u32", b, r8, sT2)
        e.valu("v_add_u32", b, sT1, b)
        e.raw("s_cmp_eq_u32 %s, 1" % sSHORT.t)
        e.raw("s_cselect_b32 %s, 4, 8" % sT2.t)
        e.valu("v_mov_b32", big, 0x40000000)
        for (dst, x) in ((vDG, 0), (vDU, 4)):
            e.valu("v_xor_b32", c, x, a)
            e.cmp("v_cmp_gt_u32", "vcc", sT2, c)
            e.valu("v_lshl_add_u32", c, c, 4, b)
            e.cnd(dst[0], big, c)
            e.valu("v_add_u32", dst[1], 8 * 3584 - 1024, dst[0])
        e.salu("s_lshl_b32", sRING, sW, 14)
        e.salu("s_add_u32", sRING, sRING, LDS_RING)
        e.raw("s_waitcnt lgkmcnt(0)")
        px, pk, pv, pwq, pwo, pwg, pwu = S(64, 2), S(66, 2), S(68, 2), S(70, 2), S(72, 2), S(76, 2), S(78, 2)
        pwd, pout, pdbg, pws = S(80, 2), S(82, 2), S(84, 2), S(86, 2)
        self.pstamp("karg")
        self.srd(sX, px, 0, 2097152)
        for i in range(16):
            e.buf_load(V(128 + 4 * i, 4), T(6), sX, 0, 64 * i, "nt" if self.o.get("xnt") else "")
        if self.o.get("cwarm"):
            nch = self.o["cwarm"]
            e.raw("s_getpc_b64 s[88:89]")
            e.label("L_pc")
            e.salu("s_lshr_b32", sT0, S(2), 3)
            e.salu("s_lshl_b32", sT0, sT0, 2)
            e.salu("s_add_u32", sT0, sT0, sW)
            e.salu("s_mul_i32", sT1, sT0, (65536 + nch - 1) // nch)
            e.salu("s_lshr_b32", sT1, sT1, 16)
            e.salu("s_mul_i32", sT1, sT1, nch)
            e.salu("s_sub_u32", sT0, sT0, sT1)
            e.salu("s_lshl_b32", sT0, sT0, 13)
            e.valu("v_lshlrev_b32", T(14), 7, l)
            e.valu("v_add_u32", T(14), sT0, T(14))
            e.valu("v_min_u32", T(14), "L_end-L_pc", T(14))
            e.valu("v_mov_b32", T(15), S(89))
            e.ins("v_add_co_u32", "valu", [T(14), "vcc"], [S(88), T(14)])
            e.nop(2)
            e.ins("v_addc_co_u32", "valu", [T(15), "vcc"], [0, T(15), "vcc"])
            i_ = e._newid()
            e.raw("global_load_dword v61, v[60:61], off")
            e.vm.append(i_); e.pend["v61"] = ("vm", i_)
        self.pstamp("xload")
        self.srd(sWG, pwg, 0, 1835008)
        self.srd(sWU, pwu, 0, 1835008)
        if not self.o.get("wdelay"):
            for t in range(self.o["depth"]):
                for th in self.tile_issue(t): th()
        self.pstamp("dma0")
        e.salu("s_lshl_b32", sT1, sG, 19)
        self.srd(sK, pk, 1536 * 256, 131072, sT1)
        self.srd(sV, pv, 1536 * 256, 131072, sT1)
        self.srd(sWQ, pwq, 0, 4194304)
        self.srd(sWO, pwo, 0, 524288, sT1)
        e.salu("s_mul_i32", sT1, sG, 224 * 1024)
        self.srd(sWD, pwd, 0, 224 * 1024, sT1)
        e.salu("s_lshl_b32", sT1, sRB, 3)
        e.salu("s_add_u32", sT1, sT1, sG)
        e.salu("s_lshl_b32", sT1, sT1, 16)
        self.srd(sPD, pws, WS_D, 65536, sT1)
        self.srd(sPS, pws, WS_S, 65536, sT1)
        if self.diag:
            e.salu("s_mov_b32", sWSP[0], pws[0]); e.salu("s_mov_b32", sWSP[1], pws[1])
        e.salu("s_mov_b32", sONES, 0x3f803f80)
        e.salu("s_mov_b32", sTHR, THR)
        e.salu("s_mov_b32", sCS, CSCALE)
        if self.o["rot"]:
            e.salu("s_mov_b32", sR14, sROT)
            for lim in (28, 14):
                e.salu("s_sub_u32", sT1, sR14, lim)
                e.raw("s_cmp_ge_u32 %s, %d" % (sR14.t, lim))
                e.raw("s_cselect_b32 %s, %s, %s" % (sR14.t, sT1.t, sR14.t))
        else:
            e.salu("s_mov_b32", sR14, 0)
        e.valu("v_lshlrev_b32", vL16, 4, l)
        e.valu("v_add_u32", vL16H, LDS_H, vL16)
        e.valu("v_lshlrev_b32", a, 2, r4)
        e.valu("v_xor_b32", a, a, c16)
        e.valu("v_lshlrev_b32", a, 4, a)
        e.valu("v_lshl_add_u32", vDV, r4, 8, a)
        e.salu("s_lshl_b32", sT1, sW, 8)
        e.valu("v_lshl_add_u32", b, r4, 10, a)
        e.valu("v_add_u32", vDW[0], sT1, b)
        for p in range(1, 4):
            e.valu("v_add_u32", vDW[p], p * 3072, vDW[0])
        e.salu("s_lshl_b32", sT2, sG, 10)
        e.salu("s_add_u32", sT1, sT1, sT2)
        e.valu("v_lshl_add_u32", b, r4, 13, a)
        e.valu("v_add_u32", vDQ[0], sT1, b)
        for p in range(1, 4):
            e.valu("v_add_u32", vDQ[p], p * (32768 - 1024), vDQ[0])
        e.salu("s_lshl_b32", sT1, sW, 3)
        for p in range(2):
            e.valu("v_add_u32", b, sT1, r4)
            if p: e.valu("v_add_u32", b, 4, b)
            e.valu("v_and_b32", b, 15, b)
            e.valu("v_xor_b32", b, b, c16)
            e.valu("v_lshlrev_b32", b, 4, b)
            e.valu("v_lshl_add_u32", vDK[p], r4, 8, b)
        rr = T(13)
        e.valu("v_and_b32", g1, 1, r4)
        e.valu("v_lshrrev_b32", hh, 5, l)
        e.valu("v_bfe_u32", rr, l, 2, 2)
        e.valu("v_and_b32", c4, 3, l)
        e.valu("v_lshl_add_u32", a, hh, 2, rr)
        e.valu("v_lshlrev_b32", a, 8, a)
        e.valu("v_lshl_add_u32", a, g1, 5, a)
        e.valu("v_lshl_add_u32", b, c4, 3, a)
        for mb in range(4):
            e.valu("v_xor_b32", c, mb, rr)
            e.valu("v_lshl_add_u32", c, c, 6, b)
            e.valu("v_add_u32", vTC[mb], sRING, c)
            e.valu("v_add_u32", vTV[mb], LDS_KV, c)
        e.valu("v_lshl_add_u32", a, hh, 3, rr)
        e.valu("v_lshlrev_b32", a, 8, a)
        e.valu("v_lshl_add_u32", a, g1, 5, a)
        e.valu("v_lshrrev_b32", b, 1, c4)
        e.valu("v_and_b32", c, 1, c4)
        e.valu("v_lshl_or_b32", b, c, 1, b)
        e.valu("v_lshl_add_u32", b, b, 3, a)
        for mb in range(4):
            e.valu("v_xor_b32", c, mb, rr)
            e.valu("v_lshl_add_u32", c, c, 6, b)
            e.valu("v_add_u32", vTN[mb], sRING, c)
        e.valu("v_lshl_add_u32", a, hh, 3, rr)
        e.valu("v_lshlrev_b32", a, 7, a)
        e.valu("v_lshl_add_u32", a, g1, 11, a)
        e.valu("v_lshl_add_u32", a, c4, 3, a)
        e.valu("v_lshrrev_b32", b, 1, rr)
        e.valu("v_lshl_or_b32", b, g1, 1, b)
        for mb in range(4):
            e.valu("v_xor_b32", c, mb, b)
            e.valu("v_lshl_add_u32", c, c, 5, a)
            e.valu("v_add_u32", vTF[mb], sRING, c)
        e.valu("v_and_b32", a, 31, l)
        e.valu("v_and_b32", b, 15, l)
        e.valu("v_xor_b32", b, b, hh)
        e.valu("v_lshlrev_b32", b, 4, b)
        e.valu("v_lshlrev_b32", a, 8, a)
        e.valu("v_add_u32", a, LDS_KV, a)
        for ks in range(8):
            e.valu("v_xor_b32", c, ks * 32, b)
            e.valu("v_add_u32", vK[ks], a, c)
        e.salu("s_lshl_b32", sT1, sW, 14)
        e.valu("v_add_u32", vST, sT1, vL16)
        e.salu("s_lshl_b32", sT1, sFO, 6)
        e.valu("v_add_u32", vHW, sT1, vL16H)
        e.salu("s_add_u32", sT1, sT1, 2 * 2048)
        e.raw("s_cmp_eq_u32 %s, 1" % sSHORT.t)
        e.raw("s_cselect_b32 %s, %d, %s" % (sT1.t, 28 * 1024, sT1.t))
        e.valu("v_add_u32", vHW3, sT1, vL16H)
        xw = T(16)
        e.salu("s_lshr_b32", sT1, sW, 1)
        e.salu("s_lshl_b32", sT1, sT1, 10)
        e.salu("s_and_b32", sT2, sW, 1)
        e.salu("s_lshl_b32", sT2, sT2, 4)
        e.valu("v_lshrrev_b32", a, 2, l)
        e.valu("v_add_u32", a, sT2, a)
        e.valu("v_and_b32", b, 3, l)
        e.valu("v_lshrrev_b32", c, 1, b)
        e.valu("v_and_b32", b, 1, b)
        e.valu("v_lshlrev_b32", xw, 11, c)
        e.valu("v_lshl_add_u32", xw, b, 9, xw)
        e.valu("v_lshlrev_b32", c, 2, c)
        e.valu("v_lshl_or_b32", c, b, 1, c)
        e.valu("v_xor_b32", a, a, c)
        e.valu("v_lshl_add_u32", xw, a, 4, xw)
        e.valu("v_add_u32", xw, sT1, xw)
        e.valu("v_and_b32", a, 31, l)
        e.valu("v_lshlrev_b32", b, 1, hh)
        e.valu("v_xor_b32", a, a, b)
        e.valu("v_lshlrev_b32", a, 4, a)
        e.valu("v_lshl_add_u32", vLX, hh, 9, a)
        self.xw = xw
        self.stamp("addr")
        if self.o.get("pstamp"):
            e.salu("s_lshl_b32", sT0, S(2), 2); e.salu("s_add_u32", sT0, sT0, sW); e.salu("s_lshl_b32", sT0, sT0, 7)
            e.valu("v_mov_b32", T(1), sT0)
            e.salu("s_add_u32", S(88), sWSP[0], WS_DBG); e.salu("s_addc_u32", S(89), sWSP[1], 0)
            e.salu("s_mov_b32", S(90), 1 << 20); e.salu("s_mov_b32", S(91), 0x20000)
            for i in range(len(self.pst)):
                e.buf_store(V(240 + i), T(1), S(88, 4), 0, 4 * (24 + i))
        self.layernorm()

    def layernorm(self):
        e = self.e
        x = lambda i: V(128 + 4 * i, 4)
        s1a, s1b, s2a, s2b = T(0), T(1), T(2), T(3)
        for r in (s1a, s1b, s2a, s2b): e.valu("v_mov_b32", r, 0)
        wd = self.o.get("wdelay")
        for i in range(16):
            if wd and i == wd:
                for t in range(self.o["depth"]):
                    for th in self.tile_issue(t): th()
            for k in range(4):
                xr = x(i)[k]
                e.valu("v_dot2_f32_bf16", s1a if k & 1 else s1b, xr, sONES, s1a if k & 1 else s1b)
                e.valu("v_dot2_f32_bf16", s2a if k & 1 else s2b, xr, xr, s2a if k & 1 else s2b)
        e.nop(3)
        e.valu("v_add_f32", s1a, s1a, s1b)
        e.valu("v_add_f32", s2a, s2a, s2b)
        for ctrl in ("quad_perm:[1,0,3,2] row_mask:0xf bank_mask:0xf", "quad_perm:[2,3,0,1] row_mask:0xf bank_mask:0xf"):
            e.dpp("v_add_f32_dpp", s1b, s1a, s1a, ctrl)
            e.dpp("v_add_f32_dpp", s2b, s2a, s2a, ctrl)
            s1a, s1b, s2a, s2b = s1b, s1a, s2b, s2a
        mean = T(4)
        rstd, shift = T(6, 2), T(8, 2)
        e.valu("v_mul_f32", mean, 1.0 / 512, s1a)
        e.valu("v_mul_f32", s2a, 1.0 / 512, s2a)
        e.valu("v_fma_f32", s2a, "-" + mean.t, mean, s2a)
        e.valu("v_max_f32", s2a, 0, s2a)
        e.valu("v_add_f32", s2a, 1e-5, s2a)
        e.valu("v_rsq_f32", rstd[0], s2a)
        e.valu("v_mul_f32", shift[0], mean, rstd[0])
        e.valu("v_sub_f32", shift[0], 0, shift[0])
        for i in range(16):
            xi = x(i)
            y = V(192 + 8 * (i & 1), 8)
            for k in range(4):
                e.valu("v_lshlrev_b32", y[2 * k], 16, xi[k])
                e.valu("v_and_b32", y[2 * k + 1], 0xffff0000, xi[k])
            for k in range(4):
                e.valu("v_pk_fma_f32", y.sub(2 * k, 2), y.sub(2 * k, 2), rstd, shift, suffix=" op_sel_hi:[1,0,0]")
            for k in range(4):
                e.valu("v_cvt_pk_bf16_f32", xi[k], y[2 * k], y[2 * k + 1])
            e.ds_write("ds_write_b128", self.xw, xi, i * 4096)
        e.wait_all(vm=False, lg=True)
        e.barrier()

    PH = [("F1", 32), ("Q", 32), ("F2", 14), ("O", 32)]
    def tile_info(self, T_):
        t = T_
        for ph, n in self.PH:
            if t < n: return ph, t, n
            t -= n
        return None
    def phase_T0(self, ph):
        t = 0
        for p, n in self.PH:
            if p == ph: return t
            t += n
    def tile_issue(self, T_):
        info = self.tile_info(T_)
        if info is None: return []
        e = self.e
        ph, s, n = info
        slot = T_ % 4
        toks = self.tiles.setdefault(T_, [])
        stride = {"F1": 16 * 3584, "Q": 16 * 8192, "F2": 16 * 1024, "O": 16 * 1024}[ph]
        th = []
        def m0(off): return TS(lambda: e.salu("s_add_u32", "m0", sRING, off))
        def d(vo, srd, off): return TM(lambda: toks.append(e.dma(vo, srd, sRUN, off)), 8)
        if s == 0:
            rot = sR14 if ph == "F2" else sROT
            if self.o["rot"]:
                sh = self.o["rotmul"]
                th.append(TS(lambda: e.salu("s_mul_i32", sRUN, rot, stride)))
            else: th.append(TS(lambda: e.salu("s_mov_b32", sRUN, 0)))
        if ph == "F1":
            th += [m0(slot * 4096), d(vDG[0], sWG, 0), d(vDG[1], sWG, 1024),
                   m0(slot * 4096 + 2048), d(vDU[0], sWU, 0), d(vDU[1], sWU, 1024)]
        else:
            srd, va = {"F2": (sWD, vDW), "Q": (sWQ, vDQ), "O": (sWO, vDW)}[ph]
            th += [m0(slot * 4096)] + [d(va[p], srd, p * 1024) for p in range(4)]
        if s + 1 < n:
            th.append(TS(lambda: e.salu("s_add_u32", sRUN, sRUN, stride)))
            tot = n * stride
            if tot & (tot - 1) == 0:
                th.append(TS(lambda: e.salu("s_and_b32", sRUN, sRUN, tot - 1)))
            else:
                def wrap():
                    e.raw("s_cmp_eq_u32 %s, 0x%x" % (sRUN.t, tot))
                    e.raw("s_cselect_b32 %s, 0, %s" % (sRUN.t, sRUN.t))
                th.append(TS(wrap, 8))
        return th

    def gemm(self, ph, nmb, accf, pre_steps=None, bgbudget=8, issue_limit=None, extra=None, gapx=None):
        e = self.e
        T0 = self.phase_T0(ph)
        n = dict(self.PH)[ph]
        depth = self.o["depth"]
        def a_reads(T_, buf):
            slot = T_ % 4
            th = []
            for mb in range(nmb):
                for j in range(2):
                    if ph == "F1": addr, off = vTF[mb], slot * 4096 + j * 512
                    elif ph == "Q": addr, off = vTN[mb], slot * 4096 + j * 1024
                    else: addr, off = vTC[mb], slot * 4096 + j * 2048
                    dst = Af(buf, mb).sub(2 * j, 2)
                    th.append(TM(lambda addr=addr, off=off, dst=dst: e.ds_read("ds_read_b64_tr_b16", dst, addr, off)))
            return th
        base = vL16H if ph == "F2" else vL16
        swz = ph in ("F1", "Q")
        def b_addr(s):
            th = []
            if s == 0:
                rot = sR14 if ph == "F2" else sROT
                if self.o["rot"]: th.append(TS(lambda: e.salu("s_lshl_b32", sBI, rot, 11)))
                else: th.append(TS(lambda: e.salu("s_mov_b32", sBI, 0)))
                if swz:
                    def ini():
                        e.salu("s_lshr_b32", sB2, sBI, 5)
                        e.salu("s_and_b32", sB2, sB2, 64)
                        e.salu("s_or_b32", sBI, sBI, sB2)
                    th.append(TS(ini, 12))
            else:
                th.append(TS(lambda: e.salu("s_add_u32", sBI, sBI, 2048)))
                if n == 32: th.append(TS(lambda: e.salu("s_and_b32", sBI, sBI, 0xffff)))
                else:
                    def wrap():
                        e.raw("s_cmp_eq_u32 %s, 0x%x" % (sBI.t, n * 2048))
                        e.raw("s_cselect_b32 %s, 0, %s" % (sBI.t, sBI.t))
                    th.append(TS(wrap, 8))
                if swz: th.append(TS(lambda: e.salu("s_xor_b32", sBI, sBI, 64)))
            if swz: th.append(Task(lambda: e.valu("v_xor_b32", vB, sBI, vLX)))
            else: th.append(Task(lambda: e.valu("v_add_u32", vB, sBI, base)))
            return th
        def b_reads(buf):
            return [TM(lambda nb=nb: e.ds_read("ds_read_b128", Bf(buf, nb), vB, nb * 1024)) for nb in range(2)]
        for th in b_addr(0): th()
        e.wait_tokens(self.tiles[T0])
        ar = a_reads(T0, 0); br = b_reads(0)
        for th in [ar[0], ar[1], br[0], br[1]] + ar[2:]: th()
        nm = nmb * 2
        for s in range(n):
            T_ = T0 + s
            buf = s & 1
            gaps = [[] for _ in range(nm)]
            if s + 1 < n:
                ar = a_reads(T_ + 1, buf ^ 1); br = b_reads(buf ^ 1)
                gaps[0] += b_addr(s + 1)
                gaps[0].insert(0, TS(lambda T1=T_ + 1: e.wait_tokens(self.tiles[T1])))
                if nm == 8:
                    plan = [[ar[0], ar[1]], [br[0], br[1]], [ar[2], ar[3]], [ar[4], ar[5]], [ar[6], ar[7]], [], [], []]
                elif nm == 4:
                    plan = [[ar[0], ar[1]], [br[0], br[1]], [ar[2], ar[3]], []]
                else: raise ValueError
                for k in range(nm): gaps[k] += plan[k]
            nxt = T_ + depth
            dm = self.tile_issue(nxt) if (issue_limit is None or nxt < issue_limit) else []
            if extra: dm = dm + extra(s)
            if dm:
                first = 1
                span = nm - first
                tot = sum(t.c for t in dm); accd = 0
                for t in dm:
                    k = first + min(span - 1, int(accd * span / tot))
                    if nm == 8: k = min(nm - 1, max(k, 1))
                    gaps[k].append(t); accd += t.c
            if gapx:
                for kk_, tl in gapx(s).items():
                    if kk_ == 0: gaps[0] = tl + gaps[0]
                    else: gaps[kk_] += tl
            regs = []
            for mb in range(nmb): regs += Af(buf, mb).regs
            for nb in range(2): regs += Bf(buf, nb).regs
            e._need(regs)
            k = 0
            for mb in range(nmb):
                for nb in range(2):
                    c = 0 if s == 0 else accf(mb, nb)
                    e.mfma(accf(mb, nb), Af(buf, mb), Bf(buf, nb), c)
                    used = sum(t.c for t in gaps[k])
                    bgt = []
                    room = min(bgbudget, 24 - used - (4 if k == nm - 1 else 0))
                    has_v = any(t.k == "v" for t in gaps[k])
                    while self.bg and room >= self.bg[0].c:
                        if self.bg[0].k != "v" and (bgt or has_v): break
                        t = self.bg.popleft(); room -= t.c; bgt.append(t)
                    for t in gaps[k]:
                        if t.k != "v": t()
                    for t in bgt:
                        if t.k != "v": t()
                    for t in gaps[k]:
                        if t.k == "v": t()
                    for t in bgt:
                        if t.k == "v": t()
                    k += 1

    def f1_epilogue_tasks(self):
        e = self.e
        th = []
        for mb in range(4):
            for nb in range(2):
                a = accV(mb, nb)
                for k in range(8): th.append(Task(lambda a=a, k=k: e.valu("v_max_f32", a[k], 0, a[k])))
                for k in range(8): th.append(Task(lambda a=a, k=k: e.valu("v_mul_f32", a[k], a[k], a[8 + k])))
                d = T(0, 4) if (mb * 2 + nb) & 1 else T(4, 4)
                for k in range(4): th.append(Task(lambda a=a, k=k, d=d: e.valu("v_cvt_pk_bf16_f32", d[k], a[2 * k], a[2 * k + 1])))
                if mb < 2: th.append(Task(lambda d=d, mb=mb, nb=nb: e.ds_write("ds_write_b128", vHW, d, (2 * mb + nb) * 1024), 16, "w"))
                else: th.append(Task(lambda d=d, mb=mb, nb=nb: e.ds_write("ds_write_b128", vHW3, d, (2 * (mb - 2) + nb) * 1024), 16, "w"))
        return th
    def q_epilogue_tasks(self):
        e = self.e
        th = []
        n = 0
        for ks in range(8):
            for u in range(2):
                a = accA(ks >> 1, u)
                o = 8 * (ks & 1)
                y = [T(8 * (n & 1) + k) for k in range(8)]
                n += 1
                for k in range(8): th.append(Task(lambda a=a, k=k, y=y, o=o: e.accread(y[k], a[o + k])))
                for k in range(8): th.append(Task(lambda k=k, y=y: e.valu("v_mul_f32", y[k], sCS, y[k])))
                d = Qf(u, ks)
                for k in range(4): th.append(Task(lambda k=k, y=y, d=d: e.valu("v_cvt_pk_bf16_f32", d[k], y[2 * k], y[2 * k + 1])))
        return th
    def d_pack_tasks(self, mb):
        e = self.e
        th = []
        for nb in range(2):
            a = accV(mb, nb)
            for q in range(2):
                idx = (mb * 2 + nb) * 2 + q
                for k in range(4):
                    t = V(32 + 4 * (idx & 1) + k)
                    th.append(Task(lambda a=a, q=q, k=k, t=t: e.valu("v_cvt_pk_bf16_f32", t, a[8 * q + 2 * k], a[8 * q + 2 * k + 1])))
                for k in range(4):
                    t = V(32 + 4 * (idx & 1) + k)
                    th.append(Task(lambda idx=idx, k=k, t=t: e.accwrite(Dpk(idx)[k], t)))
        return th
    def d_store_tasks(self, idx):
        e = self.e
        th = []
        if idx % 4 == 0: th.append(TS(lambda: e.salu("s_mov_b32", sOFF2, idx * 1024)))
        th.append(TM(lambda: e.buf_store(Dpk(idx), vST, sPD, sOFF2, (idx % 4) * 1024, self.o["dstore"]), 8))
        return th
    def s_store(self):
        e = self.e
        n = 0
        for mb in range(4):
            for nb in range(2):
                a = accV(mb, nb)
                for q in range(2):
                    d = T(4 * (n % 4), 4)
                    for k in range(4):
                        e.valu("v_cvt_pk_bf16_f32", d[k], a[8 * q + 2 * k], a[8 * q + 2 * k + 1])
                    idx = (mb * 2 + nb) * 2 + q
                    if idx % 4 == 0: e.salu("s_mov_b32", sOFF2, idx * 1024)
                    e.buf_store(d, vST, sPS, sOFF2, (idx % 4) * 1024, self.o["sstore"])
                    n += 1

    def kv_issue(self, kind, t):
        e = self.e
        toks = self.kvtok.setdefault((kind, t), [])
        base = LDS_KV + kvslot(t) + (8192 if kind == "V" else 0)
        so = sKO if kind == "K" else sVO
        th = [TS(lambda: e.salu("s_add_u32", "m0", sKVM, base))]
        for p in range(2):
            vo = vDK[p] if kind == "K" else vDV
            srd = sK if kind == "K" else sV
            th.append(TM(lambda vo=vo, srd=srd, p=p: toks.append(e.dma(vo, srd, so, p * 1024)), 8))
        th.append(TS(lambda: e.salu("s_add_u32", so, so, 8192)))
        th.append(TS(lambda: e.salu("s_and_b32", so, so, 0x1ffff)))
        return th
    def kv_setup(self):
        e = self.e
        self.kvtok = {}
        e.salu("s_lshl_b32", sKVM, sW, 11)
        if self.o["rot"]:
            e.salu("s_lshr_b32", sKO, sROT, 1)
            e.salu("s_lshl_b32", sKO, sKO, 13)
            e.salu("s_add_u32", sKO, sKO, sKVM)
        else:
            e.salu("s_mov_b32", sKO, sKVM)
        e.salu("s_mov_b32", sVO, sKO)
    def k_reads(self, t, kf=Kf):
        e = self.e
        return [TM(lambda ks=ks: e.ds_read("ds_read_b128", kf(ks), vK[ks], kvslot(t))) for ks in range(8)]
    def v_reads(self, t):
        e = self.e
        th = []
        for kk in range(2):
            for mb in range(4):
                for j in range(2):
                    th.append(TM(lambda kk=kk, mb=mb, j=j: e.ds_read("ds_read_b64_tr_b16", Vf(kk, mb).sub(2 * j, 2), vTV[mb],
                                                                       kvslot(t) + 8192 + kk * 4096 + j * 2048)))
        return th
    def qk_mfmas(self, t, czero=False, kf=Kf):
        e = self.e
        p = t & 1
        th = []
        for ks in range(8):
            for u in range(2):
                c = (0 if czero else NEG(u)) if ks == 0 else Sb(p, u)
                th.append(lambda ks=ks, u=u, c=c: e.mfma(Sb(p, u), kf(ks), Qf(u, ks), c))
        return th
    def pv_mfmas(self, t):
        e = self.e
        p = t & 1
        th = []
        for kk in range(2):
            for mb in range(4):
                for u in range(2):
                    c = 0 if (t == 0 and kk == 0) else Oacc(mb, u)
                    th.append(lambda kk=kk, mb=mb, u=u, c=c: e.mfma(Oacc(mb, u), Vf(kk, mb), Pf(p, u, kk), c))
        return th
    def sm_ops(self, t, sub=None, split=False):
        e = self.e
        p = t & 1
        pairs = []
        for kk in range(2):
            for u in range(2):
                for k2 in range(4): pairs.append((kk, u, k2))
        th = []
        def exps(n):
            kk, u, k2 = pairs[n]
            s = Sb(p, u); r0 = 8 * kk + 2 * k2
            ea, eb = vE[(2 * n) % 12], vE[(2 * n + 1) % 12]
            o = []
            if sub is not None:
                o.append(Task(lambda: e.valu("v_sub_f32", s[r0], s[r0], sub[u])))
                o.append(Task(lambda: e.valu("v_sub_f32", s[r0 + 1], s[r0 + 1], sub[u])))
            o.append(Task(lambda: e.valu("v_exp_f32", ea, s[r0]), 8))
            o.append(Task(lambda: e.valu("v_exp_f32", eb, s[r0 + 1]), 8))
            return o
        def post(n):
            kk, u, k2 = pairs[n]
            ea, eb = vE[(2 * n) % 12], vE[(2 * n + 1) % 12]
            o = []
            if kk == 0 and k2 == 0:
                o.append(Task(lambda: e.valu("v_add_f32", vTS[u], ea, eb)))
            else:
                o.append(Task(lambda: e.valu("v_add_f32", vTS[u], vTS[u], ea)))
                o.append(Task(lambda: e.valu("v_add_f32", vTS[u], vTS[u], eb)))
            o.append(Task(lambda: e.valu("v_cvt_pk_bf16_f32", Pf(p, u, kk)[k2], ea, eb)))
            return o
        if split:
            h0 = exps(0)
            for n in range(1, 8): h0 += exps(n) + post(n - 1)
            h0 += post(7)
            h1 = exps(8)
            for n in range(9, 16): h1 += exps(n) + post(n - 1)
            h1 += post(15)
            return h0, h1
        th += exps(0)
        for n in range(1, 16):
            th += exps(n); th += post(n - 1)
        th += post(15)
        return th
    def sm_check(self, t, mid=None):
        e = self.e
        p = t & 1
        e.valu("v_max_f32", vE[0], vTS[0], vTS[1])
        e.cmp("v_cmp_nge_f32", "vcc", sTHR, vE[0])
        if mid: mid()
        lab = "L_ok_%d" % t
        e.ins("s_cbranch_vccz", "salu", [], [lab], extra_uses=["vcc"])
        e.raw("s_call_b64 %s, L_slow_%d" % (sRET.t, p))
        e.label(lab)
    def rowmax(self, p, dst):
        e = self.e
        for u in range(2):
            s = Sb(p, u)
            e.valu("v_max3_f32", dst[u], s[0], s[1], s[2])
            for k in range(3, 15, 2):
                e.valu("v_max3_f32", dst[u], dst[u], s[k], s[k + 1])
            e.valu("v_max_f32", dst[u], dst[u], s[15])
        e.perm("v_permlane32_swap_b32", dst[0], dst[1])
        e.valu("v_max_f32", dst[0], dst[0], dst[1])
        e.valu("v_mov_b32", dst[1], dst[0])
        e.perm("v_permlane32_swap_b32", dst[0], dst[1])
    def slow_path(self, p):
        e = self.e
        st = e.state()
        e.label("L_slow_%d" % p)
        e.lastw, e.lastC, e.lastStore, e.pend = {}, {}, {}, {}
        e.lg, e.vm = [], []
        e.raw("s_waitcnt lgkmcnt(0)")
        e.nop(24)
        dl = [vE[0], vE[1]]; al = [vE[2], vE[3]]; tm = vE[4]
        self.rowmax(p, dl)
        for u in range(2):
            e.valu("v_max_f32", dl[u], 0, dl[u])
            e.valu("v_exp_f32", al[u], "-" + dl[u].t)
            for r in range(16):
                e.valu("v_sub_f32", NEG(u)[r], NEG(u)[r], dl[u])
                e.valu("v_sub_f32", Sb(p, u)[r], Sb(p, u)[r], dl[u])
                e.valu("v_sub_f32", Sb(p ^ 1, u)[r], Sb(p ^ 1, u)[r], dl[u])
            e.valu("v_mul_f32", vL[u], vL[u], al[u])
            for mb in range(4):
                for r in range(16):
                    e.accread(tm, Oacc(mb, u)[r])
                    e.valu("v_mul_f32", tm, tm, al[u])
                    e.accwrite(Oacc(mb, u)[r], tm)
        for th in self.sm_ops(p): th()
        e.nop(8)
        e.raw("s_setpc_b64 %s" % sRET.t)
        e.restore(st)

    def pack(self, mf, fixed, flow, lo=0, cap=24, hi=None):
        ng = len(mf)
        if hi is None: hi = ng - 1
        flow = deque((t if isinstance(t, tuple) else (t, ng + 1)) for t in flow)
        used = [sum(t.c for t in fixed[k]) for k in range(ng)]
        total = sum(t.c for t, _ in flow)
        room = sum(max(0, cap - used[k]) for k in range(lo, hi + 1))
        ratio = total / room if room else 1.0
        target = 0.0; done = 0
        for k in range(ng):
            while flow and flow[0][1] <= k:
                t, _ = flow.popleft(); done += t.c; t()
            mf[k]()
            pre = [t for t in fixed[k] if t.k != "v"]
            post = [t for t in fixed[k] if t.k == "v"]
            got = []
            if lo <= k <= hi:
                r = max(0, cap - used[k])
                target = max(target, done) if ratio > 1 else target
                target += r * min(ratio, 1.0) if ratio <= 1 else r
                while flow and (k == hi or (done + flow[0][0].c <= target + 2 and flow[0][0].c <= r)):
                    if flow[0][0].k != "v" and (got or post): break
                    t, _ = flow.popleft(); done += t.c; r -= t.c; got.append(t)
            for t in pre: t()
            for t in [x for x in got if x.k != "v"]: t()
            for t in post: t()
            for t in [x for x in got if x.k == "v"]: t()
        while flow: flow.popleft()[0]()

    def f2_extra(self):
        e = self.e
        tok = self.kvtok
        kvpre = self.kv_issue("K", 0) + self.kv_issue("V", 0) + self.kv_issue("K", 1) + self.kv_issue("V", 1)
        def extra(s):
            if s < 4: return kvpre[5 * s:5 * s + 5]
            return []
        def gapx(s):
            g = {}
            if s == 10:
                g[0] = [TS(lambda: (e.wait_tokens(tok[("K", 0)] + tok[("K", 1)] + tok[("V", 0)] + tok[("V", 1)]), e.barrier()), 8)]
            if s == 12:
                kr = self.k_reads(0)
                for j in range(8): g.setdefault(5 + j // 3, []).append(kr[j])
            if s == 13:
                g[0] = [TS(lambda: e.barrier())]
                kr = self.k_reads(1, Kf1); vr = self.v_reads(0)
                rd = kr + vr
                for j, t in enumerate(rd): g.setdefault((j * 8) // len(rd), []).append(t)
                dp = self.d_pack_tasks(0)
                for j, t in enumerate(dp): g.setdefault(4 + (j * 4) // len(dp), []).append(t)
            return g
        return extra, gapx

    def iter_fixed(self, i, base, fixed, ng, pend_l, T0):
        e = self.e
        tok = self.kvtok
        need = tok.get(("K", i + 2), []) + tok.get(("V", i + 1), [])
        fixed[base].append(TS(lambda need=need: (e.wait_tokens(need), e.barrier()), 8))
        fixed[base] += pend_l
        dm = []
        if i + 4 < 16: dm += self.kv_issue("K", i + 4)
        if i + 3 < 16: dm += self.kv_issue("V", i + 3)
        dm += self.d_store_tasks(i)
        if 8 <= i < 8 + self.o["depth"]: dm += self.tile_issue(T0 + i - 8)
        full = (ng - base) == 32
        vr = None
        if i + 2 < 16:
            for k, th in enumerate(self.k_reads(i + 2)): fixed[base + 1 + k].append(th)
            kregs = []
            for ks in range(8): kregs += Kf(ks).regs
            fixed[base + 15].append(TS(lambda kregs=kregs: e._need(kregs)))
        if i + 1 < 16:
            vr = self.v_reads(i + 1)
            if full:
                for k, th in enumerate(vr): fixed[base + 16 + (k * 12) // 16].append(th)
                vr = None
        order = [9, 10, 11, 12, 13, 14, 28, 29, 30] if full else list(range(1, 15))
        groups = []; cur = []
        for t in dm:
            cur.append(t)
            if t.k == "m": groups.append(cur); cur = []
        if cur:
            if groups: groups[-1] += cur
            else: groups.append(cur)
        for j, gtasks in enumerate(groups):
            fixed[base + order[min(len(order) - 1, j)]] += gtasks
        return vr

    def att_main(self):
        e = self.e
        tok = self.kvtok
        self.stamp("att_it_start")
        self.flush_bg()
        dl = vDL
        T0 = self.phase_T0("O")
        vregs = []
        for kk in range(2):
            for mb in range(4): vregs += Vf(kk, mb).regs
        mf = self.qk_mfmas(0, czero=True)
        fixed = [[] for _ in mf]
        dm = self.kv_issue("K", 2) + self.kv_issue("V", 2) + self.kv_issue("K", 3)
        for j, t in enumerate(dm): fixed[1 + (j * 14) // len(dm)].append(t)
        self.pack(mf, fixed, self.d_pack_tasks(1) + self.d_pack_tasks(2) + self.d_pack_tasks(3))
        self.stamp("att_it_qk0")
        mf = self.qk_mfmas(1, czero=True, kf=Kf1) + self.pv_mfmas(0) + self.qk_mfmas(2)
        ng = len(mf)
        fixed = [[] for _ in mf]
        fixed[2].append(Task(lambda: self.rowmax(0, dl), 104))
        h0, h1 = self.sm_ops(0, sub=dl, split=True)
        flow = [(t, 16) for t in h0] + [(t, 24) for t in h1]
        flow += [(Task(lambda u=u: e.valu("v_mov_b32", vL[u], vTS[u])), 30) for u in range(2)]
        for u in range(2):
            for r in range(16): flow.append((Task(lambda u=u, r=r: e.valu("v_sub_f32", NEG(u)[r], 0, dl[u])), 32))
        flow += self.sm_ops(1, sub=dl)
        self.iter_fixed(0, 16, fixed, ng, [], T0)
        self.pack(mf, fixed, flow, lo=3, hi=ng - 2)
        self.sm_check(1, mid=lambda: e._need(vregs))
        pend_l = [Task(lambda u=u: e.valu("v_add_f32", vL[u], vL[u], vTS[u])) for u in range(2)]
        for i in range(1, 16):
            e.comment("---- attention iteration %d" % i)
            if i < 13: self.stamp("att_it%d" % i)
            mf = self.pv_mfmas(i) + (self.qk_mfmas(i + 2) if i + 2 < 16 else [])
            ng = len(mf)
            fixed = [[] for _ in mf]
            e._need(vregs)
            vr = self.iter_fixed(i, 0, fixed, ng, pend_l, T0)
            flow = self.sm_ops(i + 1) if i + 1 < 16 else []
            self.pack(mf, fixed, flow, lo=self.o.get("smlo", 1), hi=ng - 2, cap=self.o.get("cap", 24))
            if vr:
                for th in vr: th()
            if i + 1 < 16:
                self.sm_check(i + 1, mid=lambda: e._need(vregs))
                pend_l = [Task(lambda u=u: e.valu("v_add_f32", vL[u], vL[u], vTS[u])) for u in range(2)]
            else: pend_l = []

    def att_epilogue(self):
        e = self.e
        e.perm("v_permlane32_swap_b32", vL[0], vL[1])
        e.valu("v_add_f32", vL[0], vL[0], vL[1])
        e.valu("v_mov_b32", vL[1], vL[0])
        e.perm("v_permlane32_swap_b32", vL[0], vL[1])
        for u in range(2): e.valu("v_rcp_f32", vL[u], vL[u])
        ow = vE[0]
        e.salu("s_lshl_b32", sT0, sW, 14)
        e.valu("v_add_u32", ow, sT0, vL16)
        n = 0
        for ks in range(8):
            for u in range(2):
                o = Oacc(ks >> 1, u).sub(8 * (ks & 1), 8)
                y = [V(128 + (n & 1) * 8 + k) for k in range(8)]
                d = V(144 + (n & 1) * 4, 4)
                for k in range(8): e.accread(y[k], o[k])
                for k in range(8): e.valu("v_mul_f32", y[k], y[k], vL[u])
                for k in range(4): e.valu("v_cvt_pk_bf16_f32", d[k], y[2 * k], y[2 * k + 1])
                e.ds_write("ds_write_b128", ow, d, (2 * ks + u) * 1024)
                n += 1
        e.wait_all(vm=False, lg=True)
        e.barrier()

    def main_kernel(self):
        e = self.e
        e.label("main_kernel")
        self.stamp("start") if False else None
        self.prologue()
        self.stamp("ln_done")
        st = e.state(); tiles0 = {k: list(v) for k, v in self.tiles.items()}
        e.raw("s_cmp_eq_u32 %s, 1" % sSHORT.t)
        e.raw("s_cbranch_scc1 L_f1b")
        self.gemm("F1", 4, accV)
        e.wait_all(vm=False, lg=True)
        vm_a = len(e.vm)
        e.raw("s_branch L_f1_join")
        e.restore(st); self.tiles = tiles0
        e.label("L_f1b")
        self.gemm("F1", 2, accV)
        e.wait_all(vm=False, lg=True)
        assert len(e.vm) == vm_a, (len(e.vm), vm_a)
        e.label("L_f1_join")
        e.lastw, e.lastC, e.lastStore = {}, {}, {}
        e.nop(12)
        self.stamp("f1")
        if self.o["bg"]: self.bg.extend(self.f1_epilogue_tasks())
        else:
            for t in self.f1_epilogue_tasks(): t()
        self.gemm("Q", 4, accA)
        self.flush_bg()
        self.kv_setup()
        self.stamp("q")
        e.wait_all(vm=False, lg=True)
        e.barrier()
        if self.o["bg"]: self.bg.extend(self.q_epilogue_tasks())
        else:
            for t in self.q_epilogue_tasks(): t()
        extra, gapx = self.f2_extra()
        self.gemm("F2", 4, accV, issue_limit=self.phase_T0("O"), extra=extra, gapx=gapx, bgbudget=16)
        self.stamp("f2")
        self.flush_bg()
        self.stamp("f2_flush")
        self.att_main()
        self.stamp("att_main")
        self.att_epilogue()
        self.stamp("att_done")
        self.gemm("O", 4, accV)
        self.stamp("o_gemm")
        self.s_store()
        e.wait_all(vm=True, lg=True)
        self.stamp("end")
        if self.diag: self.write_stamps()
        e.label("L_end")
        e.raw("s_endpgm")
        self.slow_path(0)
        self.slow_path(1)

    def write_stamps(self):
        e = self.e
        e.raw("s_waitcnt lgkmcnt(0)")
        e.salu("s_add_u32", S(4), sWSP[0], WS_DBG); e.salu("s_addc_u32", S(5), sWSP[1], 0)
        e.salu("s_mov_b32", S(6), 1 << 20); e.salu("s_mov_b32", S(7), 0x20000)
        e.salu("s_lshl_b32", sT0, S(2), 2); e.salu("s_add_u32", sT0, sT0, sW); e.salu("s_lshl_b32", sT0, sT0, 7)
        e.valu("v_mov_b32", T(1), sT0)
        for i in range(self.nstamp):
            e.valu("v_mov_b32", T(0), S(STAMP0 + 2 * i))
            e.buf_store(T(0), T(1), S(4, 4), 0, 4 * i)
        e.raw("s_memrealtime s[90:91]")
        e.raw("s_waitcnt lgkmcnt(0)")
        for i, r in enumerate((S(92), S(90), S(94))):
            e.valu("v_mov_b32", T(0), r)
            e.buf_store(T(0), T(1), S(4, 4), 0, 4 * (29 + i))
        e.wait_all()

from gen import Gen as Gen1, kd
HEADER = """; Fused LayerNorm + ReGLU FFN + sliding-window GQA attention + gated residual (gfx950).
; @launch kernel=main_kernel grid=(256,1,1) block=(256,1,1) lds=163840
; @launch kernel=final_kernel grid=(256,1,1) block=(256,1,1) lds=0
.amdgcn_target "amdgcn-amd-amdhsa--gfx950"
.text
"""
def build(diag=False, opt=None):
    g = Gen(diag=diag, opt=opt)
    g.main_kernel()
    main = g.e.text()
    stats = dict(g.e.stats)
    names = g.stamp_names
    fin = Gen1().final_kernel()
    s = HEADER
    s += ".globl main_kernel\n.p2align 8\n.type main_kernel,@function\n" + main
    s += ".globl final_kernel\n.p2align 8\n.type final_kernel,@function\n" + fin
    s += '.section .rodata,"a"\n.p2align 6\n' + kd("main_kernel", 512, 256) + ".p2align 6\n" + kd("final_kernel", 192, 192)
    return s, stats, names

if __name__ == "__main__":
    diag = "--diag" in sys.argv
    opt = {}
    for a in sys.argv[1:]:
        if a.startswith("--") and "=" in a:
            k, v = a[2:].split("=")
            opt[k] = {"True": True, "False": False}.get(v, int(v) if v.lstrip("-").isdigit() else v)
    out = [a for a in sys.argv[1:] if not a.startswith("--")]
    s, stats, names = build(diag, opt)
    path = out[0] if out else "cdna_kernels/%s.s" % NAME
    open(path, "w").write(s)
    print(path, len(s), "bytes", stats, names)
```

```python
import sys, struct, math
from collections import deque
from emit import E, V, A, S, R

NAME = "recurrent_scan__sliding_block_cached__glu_gated_reglu__prompt"

LDS_XN   = 0
LDS_H    = 65536
LDS_DUMMY = LDS_H + 28 * 1024
LDS_RING = 98304
LDS_KV   = 32768
def kvslot(t): return (t % 4) * 16384
WS_D, WS_S, WS_DBG = 0, 16 << 20, 40 << 20
CSCALE   = (128 ** -0.5) * math.log2(math.e)
THR      = float(2 ** 24)

sX, sK, sV, sWQ, sWO, sWG, sWU, sWD, sPD, sPS = [S(4 * i + 4, 4) for i in range(10)]
sG, sRB, sW, sRING, sRUN, sT0, sTHR, sT1, sT2, sOFF2 = [S(44 + i) for i in range(10)]
sONES, sKVM, sKO, sVO, sBI, sB2 = S(54), S(55), S(56), S(57), S(58), S(59)
sRET  = S(60, 2)
sR14, sCS = S(62), S(63)
sFO, sSHORT, sROT = S(98), S(99), S(100)
sWSP = S(96, 2)
STAMP0 = 64

vTID, vLANE, vL16, vL16H = V(0), V(1), V(2), V(3)
vTC = [V(4 + i) for i in range(4)]
vTV = [V(8 + i) for i in range(4)]
vK  = [V(12 + i) for i in range(8)]
vDW = [V(20 + i) for i in range(4)]
vDK = [V(24), V(25)]
vDV = V(26)
vST = V(27)
vTN = [V(28 + i) for i in range(4)]
vTF = [V(32 + i) for i in range(4)]
vDG = [V(36), V(37)]
vDU = [V(38), V(39)]
vDQ = [V(40 + i) for i in range(4)]
vHW, vHW3, vB = V(44), V(45), V(0)
vLX = V(63)
TMP = 46
def T(i, n=1): return V(TMP + i, n)
QF  = 64
def Qf(u, ks): return V(QF + (u * 8 + ks) * 4, 4)
def accV(mb, nb): return V(128 + (mb * 2 + nb) * 16, 16)
def accA(mb, nb): return A((mb * 2 + nb) * 16, 16)
def Sb(p, u): return V(128 + (p * 2 + u) * 16, 16)
def NEG(u): return V(192 + u * 16, 16)
def Pf(p, u, kk): return V(224 + ((p * 2 + u) * 2 + kk) * 4, 4)
Oacc = accA
def Af(buf, mb): return A(128 + buf * 16 + mb * 4, 4)
def Bf(buf, nb): return A(160 + buf * 8 + nb * 4, 4)
def Dpk(idx): return A(128 + 4 * idx, 4)
def Kf(ks): return A(192 + 4 * ks, 4)
def Vf(kk, mb): return A(224 + (kk * 4 + mb) * 4, 4)
def Kf1(ks): return A(4 * ks, 4)
vL = [V(28), V(29)]
vTS = [V(30), V(31)]
vE = [V(32 + i) for i in range(12)]
vDL = [V(44), V(45)]

COST = {"exp": 8}

class Task:
    __slots__ = ("f", "c", "k")
    def __init__(self, f, c=4, k="v"): self.f, self.c, self.k = f, c, k
    def __call__(self): self.f()
def TS(f, c=4): return Task(f, c, "s")
def TM(f, c=4): return Task(f, c, "m")
def run_gap(tasks):
    for t in tasks:
        if t.k != "v": t()
    for t in tasks:
        if t.k == "v": t()

class Gen:
    def __init__(self, diag=False, opt=None):
        self.e = E()
        self.diag = diag
        self.o = dict(bg=True, depth=4, rot=True, dstore="sc1", sstore="sc1", rotmul=1, xmap=1)
        if opt: self.o.update(opt)
        self.nstamp = 0
        self.tiles = {}
        self.bg = deque()
        self.stamp_names = []
        self.pst = []
    def stamp(self, name, force=False):
        if not self.diag: return
        mode = self.o.get("stamps", "phase")
        if (mode == "att") != name.startswith("att_it"): return
        e = self.e
        if mode == "att":
            r = S(STAMP0 + 2 * self.nstamp, 2)
            e.raw("s_memtime %s" % r.t)
            self.nstamp += 1
            self.stamp_names.append(name)
            return
        r = S(STAMP0 + 2 * self.nstamp, 2)
        e.comment("stamp " + name)
        e.raw("s_memtime %s" % r.t)
        e.wait_all(vm=False, lg=True)
        self.nstamp += 1
        self.stamp_names.append(name)
    def pstamp(self, name):
        if not self.o.get("pstamp"): return
        e = self.e
        n = len(self.pst)
        e.raw("s_memtime s[88:89]")
        e.raw("s_waitcnt lgkmcnt(0)")
        e.raw("v_mov_b32 v%d, s88" % (240 + n))
        self.pst.append(name)
    def srd(self, dst, ptr, off_lo, size, off_reg=None):
        e = self.e
        if off_reg is not None:
            e.salu("s_add_u32", dst[0], ptr[0], off_reg)
            e.salu("s_addc_u32", dst[1], ptr[1], 0)
            if off_lo:
                e.salu("s_add_u32", dst[0], dst[0], off_lo)
                e.salu("s_addc_u32", dst[1], dst[1], 0)
        elif off_lo:
            e.salu("s_add_u32", dst[0], ptr[0], off_lo)
            e.salu("s_addc_u32", dst[1], ptr[1], 0)
        else:
            e.salu("s_mov_b32", dst[0], ptr[0])
            e.salu("s_mov_b32", dst[1], ptr[1])
        e.salu("s_mov_b32", dst[2], size)
        e.salu("s_mov_b32", dst[3], 0x20000)
    def run_bg(self, budget):
        while self.bg and budget >= self.bg[0].c:
            t = self.bg.popleft(); budget -= t.c; t()
    def flush_bg(self):
        while self.bg: self.bg.popleft()()

    def prologue(self):
        e = self.e
        e.raw("s_cmp_ge_u32 s2, 256")
        e.raw("s_cbranch_scc1 L_end")
        if self.diag:
            e.raw("s_memrealtime s[92:93]")
            e.raw("s_memtime s[94:95]")
        e.raw("s_load_dwordx16 s[64:79], s[0:1], 0")
        e.raw("s_load_dwordx8 s[80:87], s[0:1], 64")
        ng = self.o["xmap"]
        if ng == 1:
            e.salu("s_and_b32", sG, S(2), 7)
            e.salu("s_lshr_b32", sRB, S(2), 3)
        else:
            lg = {2: 1, 4: 2, 8: 3}[ng]
            e.salu("s_and_b32", sT0, S(2), 7)
            e.salu("s_lshr_b32", sT1, S(2), 3)
            e.salu("s_and_b32", sG, sT0, 8 // ng - 1)
            e.salu("s_lshl_b32", sG, sG, lg)
            e.salu("s_and_b32", sT2, sT1, ng - 1)
            e.salu("s_add_u32", sG, sG, sT2)
            e.salu("s_lshr_b32", sRB, sT0, 3 - lg)
            e.salu("s_mul_i32", sRB, sRB, 32 // ng)
            e.salu("s_lshr_b32", sT2, sT1, lg)
            e.salu("s_add_u32", sRB, sRB, sT2)
        e.salu("s_and_b32", sROT, sRB, 32 // ng - 1)
        if ng > 1: e.salu("s_lshl_b32", sROT, sROT, {2: 1, 4: 2, 8: 3}[ng])
        e.valu("v_and_b32", vLANE, 63, vTID)
        e.valu("v_lshrrev_b32", T(0), 6, vTID)
        e.rdlane(sW, T(0))
        l = vLANE
        r4, c16, g1, hh, c4 = T(1), T(2), T(3), T(4), T(5)
        e.valu("v_and_b32", c16, 15, l)
        e.valu("v_lshrrev_b32", r4, 4, l)
        e.salu("s_lshl_b32", sT0, sRB, 6)
        e.salu("s_lshl_b32", sT1, sW, 4)
        e.salu("s_add_u32", sT0, sT0, sT1)
        e.valu("v_lshrrev_b32", T(14), 2, l)
        e.valu("v_and_b32", T(15), 3, l)
        e.valu("v_add_u32", T(6), sT0, T(14))
        e.valu("v_lshlrev_b32", T(6), 10, T(6))
        e.valu("v_lshl_add_u32", T(6), T(15), 4, T(6))
        a, b, c = T(7), T(8), T(9)
        r8, c8, big = T(10), T(11), T(12)
        e.valu("v_lshrrev_b32", r8, 3, l)
        e.valu("v_and_b32", c8, 7, l)
        e.valu("v_and_b32", a, 2, r8)
        e.valu("v_xor_b32", a, a, c8)
        e.salu("s_lshl_b32", sFO, sW, 7)
        e.salu("s_and_b32", sT0, sG, 1)
        e.salu("s_lshl_b32", sT2, sT0, 6)
        e.raw("s_cmp_eq_u32 %s, 0" % sW.t)
        e.raw("s_cselect_b32 %s, 0, %s" % (sT2.t, sT2.t))
        e.salu("s_sub_u32", sFO, sFO, sT2)
        e.salu("s_mul_i32", sT2, sT0, 3)
        e.salu("s_add_u32", sT2, sT2, sW)
        e.raw("s_cmp_eq_u32 %s, 3" % sT2.t)
        e.raw("s_cselect_b32 %s, 1, 0" % sSHORT.t)
        e.raw("s_cmp_eq_u32 %s, 6" % sT2.t)
        e.raw("s_cselect_b32 %s, 0, %s" % (sSHORT.t, sSHORT.t))
        e.salu("s_mul_i32", sT1, sG, 448)
        e.salu("s_add_u32", sT1, sT1, sFO)
        e.salu("s_mov_b32", sT2, 3584)
        e.valu("v_mul_lo_u32", b, r8, sT2)
        e.valu("v_add_u32", b, sT1, b)
        e.raw("s_cmp_eq_u32 %s, 1" % sSHORT.t)
        e.raw("s_cselect_b32 %s, 4, 8" % sT2.t)
        e.valu("v_mov_b32", big, 0x40000000)
        for (dst, x) in ((vDG, 0), (vDU, 4)):
            e.valu("v_xor_b32", c, x, a)
            e.cmp("v_cmp_gt_u32", "vcc", sT2, c)
            e.valu("v_lshl_add_u32", c, c, 4, b)
            e.cnd(dst[0], big, c)
            e.valu("v_add_u32", dst[1], 8 * 3584 - 1024, dst[0])
        e.salu("s_lshl_b32", sRING, sW, 14)
        e.salu("s_add_u32", sRING, sRING, LDS_RING)
        e.raw("s_waitcnt lgkmcnt(0)")
        px, pk, pv, pwq, pwo, pwg, pwu = S(64, 2), S(66, 2), S(68, 2), S(70, 2), S(72, 2), S(76, 2), S(78, 2)
        pwd, pout, pdbg, pws = S(80, 2), S(82, 2), S(84, 2), S(86, 2)
        self.pstamp("karg")
        self.srd(sX, px, 0, 2097152)
        for i in range(16):
            e.buf_load(V(128 + 4 * i, 4), T(6), sX, 0, 64 * i, "nt" if self.o.get("xnt") else "")
        if self.o.get("cwarm"):
            nch = self.o["cwarm"]
            e.raw("s_getpc_b64 s[88:89]")
            e.label("L_pc")
            e.salu("s_lshr_b32", sT0, S(2), 3)
            e.salu("s_lshl_b32", sT0, sT0, 2)
            e.salu("s_add_u32", sT0, sT0, sW)
            e.salu("s_mul_i32", sT1, sT0, (65536 + nch - 1) // nch)
            e.salu("s_lshr_b32", sT1, sT1, 16)
            e.salu("s_mul_i32", sT1, sT1, nch)
            e.salu("s_sub_u32", sT0, sT0, sT1)
            e.salu("s_lshl_b32", sT0, sT0, 13)
            e.valu("v_lshlrev_b32", T(14), 7, l)
            e.valu("v_add_u32", T(14), sT0, T(14))
            e.valu("v_min_u32", T(14), "L_end-L_pc", T(14))
            e.valu("v_mov_b32", T(15), S(89))
            e.ins("v_add_co_u32", "valu", [T(14), "vcc"], [S(88), T(14)])
            e.nop(2)
            e.ins("v_addc_co_u32", "valu", [T(15), "vcc"], [0, T(15), "vcc"])
            i_ = e._newid()
            e.raw("global_load_dword v61, v[60:61], off")
            e.vm.append(i_); e.pend["v61"] = ("vm", i_)
        self.pstamp("xload")
        self.srd(sWG, pwg, 0, 1835008)
        self.srd(sWU, pwu, 0, 1835008)
        if not self.o.get("wdelay"):
            for t in range(self.o["depth"]):
                for th in self.tile_issue(t): th()
        self.pstamp("dma0")
        e.salu("s_lshl_b32", sT1, sG, 19)
        self.srd(sK, pk, 1536 * 256, 131072, sT1)
        self.srd(sV, pv, 1536 * 256, 131072, sT1)
        self.srd(sWQ, pwq, 0, 4194304)
        self.srd(sWO, pwo, 0, 524288, sT1)
        e.salu("s_mul_i32", sT1, sG, 224 * 1024)
        self.srd(sWD, pwd, 0, 224 * 1024, sT1)
        e.salu("s_lshl_b32", sT1, sRB, 3)
        e.salu("s_add_u32", sT1, sT1, sG)
        e.salu("s_lshl_b32", sT1, sT1, 16)
        self.srd(sPD, pws, WS_D, 65536, sT1)
        self.srd(sPS, pws, WS_S, 65536, sT1)
        if self.diag:
            e.salu("s_mov_b32", sWSP[0], pws[0]); e.salu("s_mov_b32", sWSP[1], pws[1])
        e.salu("s_mov_b32", sONES, 0x3f803f80)
        e.salu("s_mov_b32", sTHR, THR)
        e.salu("s_mov_b32", sCS, CSCALE)
        if self.o["rot"]:
            e.salu("s_mov_b32", sR14, sROT)
            for lim in (28, 14):
                e.salu("s_sub_u32", sT1, sR14, lim)
                e.raw("s_cmp_ge_u32 %s, %d" % (sR14.t, lim))
                e.raw("s_cselect_b32 %s, %s, %s" % (sR14.t, sT1.t, sR14.t))
        else:
            e.salu("s_mov_b32", sR14, 0)
        e.valu("v_lshlrev_b32", vL16, 4, l)
        e.valu("v_add_u32", vL16H, LDS_H, vL16)
        e.valu("v_lshlrev_b32", a, 2, r4)
        e.valu("v_xor_b32", a, a, c16)
        e.valu("v_lshlrev_b32", a, 4, a)
        e.valu("v_lshl_add_u32", vDV, r4, 8, a)
        e.salu("s_lshl_b32", sT1, sW, 8)
        e.valu("v_lshl_add_u32", b, r4, 10, a)
        e.valu("v_add_u32", vDW[0], sT1, b)
        for p in range(1, 4):
            e.valu("v_add_u32", vDW[p], p * 3072, vDW[0])
        e.salu("s_lshl_b32", sT2, sG, 10)
        e.salu("s_add_u32", sT1, sT1, sT2)
        e.valu("v_lshl_add_u32", b, r4, 13, a)
        e.valu("v_add_u32", vDQ[0], sT1, b)
        for p in range(1, 4):
            e.valu("v_add_u32", vDQ[p], p * (32768 - 1024), vDQ[0])
        e.salu("s_lshl_b32", sT1, sW, 3)
        for p in range(2):
            e.valu("v_add_u32", b, sT1, r4)
            if p: e.valu("v_add_u32", b, 4, b)
            e.valu("v_and_b32", b, 15, b)
            e.valu("v_xor_b32", b, b, c16)
            e.valu("v_lshlrev_b32", b, 4, b)
            e.valu("v_lshl_add_u32", vDK[p], r4, 8, b)
        rr = T(13)
        e.valu("v_and_b32", g1, 1, r4)
        e.valu("v_lshrrev_b32", hh, 5, l)
        e.valu("v_bfe_u32", rr, l, 2, 2)
        e.valu("v_and_b32", c4, 3, l)
        e.valu("v_lshl_add_u32", a, hh, 2, rr)
        e.valu("v_lshlrev_b32", a, 8, a)
        e.valu("v_lshl_add_u32", a, g1, 5, a)
        e.valu("v_lshl_add_u32", b, c4, 3, a)
        for mb in range(4):
            e.valu("v_xor_b32", c, mb, rr)
            e.valu("v_lshl_add_u32", c, c, 6, b)
            e.valu("v_add_u32", vTC[mb], sRING, c)
            e.valu("v_add_u32", vTV[mb], LDS_KV, c)
        e.valu("v_lshl_add_u32", a, hh, 3, rr)
        e.valu("v_lshlrev_b32", a, 8, a)
        e.valu("v_lshl_add_u32", a, g1, 5, a)
        e.valu("v_lshrrev_b32", b, 1, c4)
        e.valu("v_and_b32", c, 1, c4)
        e.valu("v_lshl_or_b32", b, c, 1, b)
        e.valu("v_lshl_add_u32", b, b, 3, a)
        for mb in range(4):
            e.valu("v_xor_b32", c, mb, rr)
            e.valu("v_lshl_add_u32", c, c, 6, b)
            e.valu("v_add_u32", vTN[mb], sRING, c)
        e.valu("v_lshl_add_u32", a, hh, 3, rr)
        e.valu("v_lshlrev_b32", a, 7, a)
        e.valu("v_lshl_add_u32", a, g1, 11, a)
        e.valu("v_lshl_add_u32", a, c4, 3, a)
        e.valu("v_lshrrev_b32", b, 1, rr)
        e.valu("v_lshl_or_b32", b, g1, 1, b)
        for mb in range(4):
            e.valu("v_xor_b32", c, mb, b)
            e.valu("v_lshl_add_u32", c, c, 5, a)
            e.valu("v_add_u32", vTF[mb], sRING, c)
        e.valu("v_and_b32", a, 31, l)
        e.valu("v_and_b32", b, 15, l)
        e.valu("v_xor_b32", b, b, hh)
        e.valu("v_lshlrev_b32", b, 4, b)
        e.valu("v_lshlrev_b32", a, 8, a)
        e.valu("v_add_u32", a, LDS_KV, a)
        for ks in range(8):
            e.valu("v_xor_b32", c, ks * 32, b)
            e.valu("v_add_u32", vK[ks], a, c)
        e.salu("s_lshl_b32", sT1, sW, 14)
        e.valu("v_add_u32", vST, sT1, vL16)
        e.salu("s_lshl_b32", sT1, sFO, 6)
        e.valu("v_add_u32", vHW, sT1, vL16H)
        e.salu("s_add_u32", sT1, sT1, 2 * 2048)
        e.raw("s_cmp_eq_u32 %s, 1" % sSHORT.t)
        e.raw("s_cselect_b32 %s, %d, %s" % (sT1.t, 28 * 1024, sT1.t))
        e.valu("v_add_u32", vHW3, sT1, vL16H)
        xw = T(16)
        e.salu("s_lshr_b32", sT1, sW, 1)
        e.salu("s_lshl_b32", sT1, sT1, 10)
        e.salu("s_and_b32", sT2, sW, 1)
        e.salu("s_lshl_b32", sT2, sT2, 4)
        e.valu("v_lshrrev_b32", a, 2, l)
        e.valu("v_add_u32", a, sT2, a)
        e.valu("v_and_b32", b, 3, l)
        e.valu("v_lshrrev_b32", c, 1, b)
        e.valu("v_and_b32", b, 1, b)
        e.valu("v_lshlrev_b32", xw, 11, c)
        e.valu("v_lshl_add_u32", xw, b, 9, xw)
        e.valu("v_lshlrev_b32", c, 2, c)
        e.valu("v_lshl_or_b32", c, b, 1, c)
        e.valu("v_xor_b32", a, a, c)
        e.valu("v_lshl_add_u32", xw, a, 4, xw)
        e.valu("v_add_u32", xw, sT1, xw)
        e.valu("v_and_b32", a, 31, l)
        e.valu("v_lshlrev_b32", b, 1, hh)
        e.valu("v_xor_b32", a, a, b)
        e.valu("v_lshlrev_b32", a, 4, a)
        e.valu("v_lshl_add_u32", vLX, hh, 9, a)
        self.xw = xw
        self.stamp("addr")
        if self.o.get("pstamp"):
            e.salu("s_lshl_b32", sT0, S(2), 2); e.salu("s_add_u32", sT0, sT0, sW); e.salu("s_lshl_b32", sT0, sT0, 7)
            e.valu("v_mov_b32", T(1), sT0)
            e.salu("s_add_u32", S(88), sWSP[0], WS_DBG); e.salu("s_addc_u32", S(89), sWSP[1], 0)
            e.salu("s_mov_b32", S(90), 1 << 20); e.salu("s_mov_b32", S(91), 0x20000)
            for i in range(len(self.pst)):
                e.buf_store(V(240 + i), T(1), S(88, 4), 0, 4 * (24 + i))
        self.layernorm()

    def layernorm(self):
        e = self.e
        x = lambda i: V(128 + 4 * i, 4)
        s1a, s1b, s2a, s2b = T(0), T(1), T(2), T(3)
        for r in (s1a, s1b, s2a, s2b): e.valu("v_mov_b32", r, 0)
        wd = self.o.get("wdelay")
        for i in range(16):
            if wd and i == wd:
                for t in range(self.o["depth"]):
                    for th in self.tile_issue(t): th()
            for k in range(4):
                xr = x(i)[k]
                e.valu("v_dot2_f32_bf16", s1a if k & 1 else s1b, xr, sONES, s1a if k & 1 else s1b)
                e.valu("v_dot2_f32_bf16", s2a if k & 1 else s2b, xr, xr, s2a if k & 1 else s2b)
        e.nop(3)
        e.valu("v_add_f32", s1a, s1a, s1b)
        e.valu("v_add_f32", s2a, s2a, s2b)
        for ctrl in ("quad_perm:[1,0,3,2] row_mask:0xf bank_mask:0xf", "quad_perm:[2,3,0,1] row_mask:0xf bank_mask:0xf"):
            e.dpp("v_add_f32_dpp", s1b, s1a, s1a, ctrl)
            e.dpp("v_add_f32_dpp", s2b, s2a, s2a, ctrl)
            s1a, s1b, s2a, s2b = s1b, s1a, s2b, s2a
        mean = T(4)
        rstd, shift = T(6, 2), T(8, 2)
        e.valu("v_mul_f32", mean, 1.0 / 512, s1a)
        e.valu("v_mul_f32", s2a, 1.0 / 512, s2a)
        e.valu("v_fma_f32", s2a, "-" + mean.t, mean, s2a)
        e.valu("v_max_f32", s2a, 0, s2a)
        e.valu("v_add_f32", s2a, 1e-5, s2a)
        e.valu("v_rsq_f32", rstd[0], s2a)
        e.valu("v_mul_f32", shift[0], mean, rstd[0])
        e.valu("v_sub_f32", shift[0], 0, shift[0])
        for i in range(16):
            xi = x(i)
            y = V(192 + 8 * (i & 1), 8)
            for k in range(4):
                e.valu("v_lshlrev_b32", y[2 * k], 16, xi[k])
                e.valu("v_and_b32", y[2 * k + 1], 0xffff0000, xi[k])
            for k in range(4):
                e.valu("v_pk_fma_f32", y.sub(2 * k, 2), y.sub(2 * k, 2), rstd, shift, suffix=" op_sel_hi:[1,0,0]")
            for k in range(4):
                e.valu("v_cvt_pk_bf16_f32", xi[k], y[2 * k], y[2 * k + 1])
            e.ds_write("ds_write_b128", self.xw, xi, i * 4096)
        e.wait_all(vm=False, lg=True)
        e.barrier()

    PH = [("F1", 32), ("Q", 32), ("F2", 14), ("O", 32)]
    def tile_info(self, T_):
        t = T_
        for ph, n in self.PH:
            if t < n: return ph, t, n
            t -= n
        return None
    def phase_T0(self, ph):
        t = 0
        for p, n in self.PH:
            if p == ph: return t
            t += n
    def tile_issue(self, T_):
        info = self.tile_info(T_)
        if info is None: return []
        e = self.e
        ph, s, n = info
        slot = T_ % 4
        toks = self.tiles.setdefault(T_, [])
        stride = {"F1": 16 * 3584, "Q": 16 * 8192, "F2": 16 * 1024, "O": 16 * 1024}[ph]
        th = []
        def m0(off): return TS(lambda: e.salu("s_add_u32", "m0", sRING, off))
        def d(vo, srd, off): return TM(lambda: toks.append(e.dma(vo, srd, sRUN, off)), 8)
        if s == 0:
            rot = sR14 if ph == "F2" else sROT
            if self.o["rot"]:
                sh = self.o["rotmul"]
                th.append(TS(lambda: e.salu("s_mul_i32", sRUN, rot, stride)))
            else: th.append(TS(lambda: e.salu("s_mov_b32", sRUN, 0)))
        if ph == "F1":
            th += [m0(slot * 4096), d(vDG[0], sWG, 0), d(vDG[1], sWG, 1024),
                   m0(slot * 4096 + 2048), d(vDU[0], sWU, 0), d(vDU[1], sWU, 1024)]
        else:
            srd, va = {"F2": (sWD, vDW), "Q": (sWQ, vDQ), "O": (sWO, vDW)}[ph]
            th += [m0(slot * 4096)] + [d(va[p], srd, p * 1024) for p in range(4)]
        if s + 1 < n:
            th.append(TS(lambda: e.salu("s_add_u32", sRUN, sRUN, stride)))
            tot = n * stride
            if tot & (tot - 1) == 0:
                th.append(TS(lambda: e.salu("s_and_b32", sRUN, sRUN, tot - 1)))
            else:
                def wrap():
                    e.raw("s_cmp_eq_u32 %s, 0x%x" % (sRUN.t, tot))
                    e.raw("s_cselect_b32 %s, 0, %s" % (sRUN.t, sRUN.t))
                th.append(TS(wrap, 8))
        return th

    def gemm(self, ph, nmb, accf, pre_steps=None, bgbudget=8, issue_limit=None, extra=None, gapx=None):
        e = self.e
        T0 = self.phase_T0(ph)
        n = dict(self.PH)[ph]
        depth = self.o["depth"]
        def a_reads(T_, buf):
            slot = T_ % 4
            th = []
            for mb in range(nmb):
                for j in range(2):
                    if ph == "F1": addr, off = vTF[mb], slot * 4096 + j * 512
                    elif ph == "Q": addr, off = vTN[mb], slot * 4096 + j * 1024
                    else: addr, off = vTC[mb], slot * 4096 + j * 2048
                    dst = Af(buf, mb).sub(2 * j, 2)
                    th.append(TM(lambda addr=addr, off=off, dst=dst: e.ds_read("ds_read_b64_tr_b16", dst, addr, off)))
            return th
        base = vL16H if ph == "F2" else vL16
        swz = ph in ("F1", "Q")
        def b_addr(s):
            th = []
            if s == 0:
                rot = sR14 if ph == "F2" else sROT
                if self.o["rot"]: th.append(TS(lambda: e.salu("s_lshl_b32", sBI, rot, 11)))
                else: th.append(TS(lambda: e.salu("s_mov_b32", sBI, 0)))
                if swz:
                    def ini():
                        e.salu("s_lshr_b32", sB2, sBI, 5)
                        e.salu("s_and_b32", sB2, sB2, 64)
                        e.salu("s_or_b32", sBI, sBI, sB2)
                    th.append(TS(ini, 12))
            else:
                th.append(TS(lambda: e.salu("s_add_u32", sBI, sBI, 2048)))
                if n == 32: th.append(TS(lambda: e.salu("s_and_b32", sBI, sBI, 0xffff)))
                else:
                    def wrap():
                        e.raw("s_cmp_eq_u32 %s, 0x%x" % (sBI.t, n * 2048))
                        e.raw("s_cselect_b32 %s, 0, %s" % (sBI.t, sBI.t))
                    th.append(TS(wrap, 8))
                if swz: th.append(TS(lambda: e.salu("s_xor_b32", sBI, sBI, 64)))
            if swz: th.append(Task(lambda: e.valu("v_xor_b32", vB, sBI, vLX)))
            else: th.append(Task(lambda: e.valu("v_add_u32", vB, sBI, base)))
            return th
        def b_reads(buf):
            return [TM(lambda nb=nb: e.ds_read("ds_read_b128", Bf(buf, nb), vB, nb * 1024)) for nb in range(2)]
        for th in b_addr(0): th()
        e.wait_tokens(self.tiles[T0])
        ar = a_reads(T0, 0); br = b_reads(0)
        for th in [ar[0], ar[1], br[0], br[1]] + ar[2:]: th()
        nm = nmb * 2
        for s in range(n):
            T_ = T0 + s
            buf = s & 1
            gaps = [[] for _ in range(nm)]
            if s + 1 < n:
                ar = a_reads(T_ + 1, buf ^ 1); br = b_reads(buf ^ 1)
                gaps[0] += b_addr(s + 1)
                gaps[0].insert(0, TS(lambda T1=T_ + 1: e.wait_tokens(self.tiles[T1])))
                if nm == 8:
                    plan = [[ar[0], ar[1]], [br[0], br[1]], [ar[2], ar[3]], [ar[4], ar[5]], [ar[6], ar[7]], [], [], []]
                elif nm == 4:
                    plan = [[ar[0], ar[1]], [br[0], br[1]], [ar[2], ar[3]], []]
                else: raise ValueError
                for k in range(nm): gaps[k] += plan[k]
            nxt = T_ + depth
            dm = self.tile_issue(nxt) if (issue_limit is None or nxt < issue_limit) else []
            if extra: dm = dm + extra(s)
            if dm:
                first = 1
                span = nm - first
                tot = sum(t.c for t in dm); accd = 0
                for t in dm:
                    k = first + min(span - 1, int(accd * span / tot))
                    if nm == 8: k = min(nm - 1, max(k, 1))
                    gaps[k].append(t); accd += t.c
            if gapx:
                for kk_, tl in gapx(s).items():
                    if kk_ == 0: gaps[0] = tl + gaps[0]
                    else: gaps[kk_] += tl
            regs = []
            for mb in range(nmb): regs += Af(buf, mb).regs
            for nb in range(2): regs += Bf(buf, nb).regs
            e._need(regs)
            k = 0
            for mb in range(nmb):
                for nb in range(2):
                    c = 0 if s == 0 else accf(mb, nb)
                    e.mfma(accf(mb, nb), Af(buf, mb), Bf(buf, nb), c)
                    used = sum(t.c for t in gaps[k])
                    bgt = []
                    room = min(bgbudget, 24 - used - (4 if k == nm - 1 else 0))
                    has_v = any(t.k == "v" for t in gaps[k])
                    while self.bg and room >= self.bg[0].c:
                        if self.bg[0].k != "v" and (bgt or has_v): break
                        t = self.bg.popleft(); room -= t.c; bgt.append(t)
                    for t in gaps[k]:
                        if t.k != "v": t()
                    for t in bgt:
                        if t.k != "v": t()
                    for t in gaps[k]:
                        if t.k == "v": t()
                    for t in bgt:
                        if t.k == "v": t()
                    k += 1

    def f1_epilogue_tasks(self):
        e = self.e
        th = []
        for mb in range(4):
            for nb in range(2):
                a = accV(mb, nb)
                for k in range(8): th.append(Task(lambda a=a, k=k: e.valu("v_max_f32", a[k], 0, a[k])))
                for k in range(8): th.append(Task(lambda a=a, k=k: e.valu("v_mul_f32", a[k], a[k], a[8 + k])))
                d = T(0, 4) if (mb * 2 + nb) & 1 else T(4, 4)
                for k in range(4): th.append(Task(lambda a=a, k=k, d=d: e.valu("v_cvt_pk_bf16_f32", d[k], a[2 * k], a[2 * k + 1])))
                if mb < 2: th.append(Task(lambda d=d, mb=mb, nb=nb: e.ds_write("ds_write_b128", vHW, d, (2 * mb + nb) * 1024), 16, "w"))
                else: th.append(Task(lambda d=d, mb=mb, nb=nb: e.ds_write("ds_write_b128", vHW3, d, (2 * (mb - 2) + nb) * 1024), 16, "w"))
        return th
    def q_epilogue_tasks(self):
        e = self.e
        th = []
        n = 0
        for ks in range(8):
            for u in range(2):
                a = accA(ks >> 1, u)
                o = 8 * (ks & 1)
                y = [T(8 * (n & 1) + k) for k in range(8)]
                n += 1
                for k in range(8): th.append(Task(lambda a=a, k=k, y=y, o=o: e.accread(y[k], a[o + k])))
                for k in range(8): th.append(Task(lambda k=k, y=y: e.valu("v_mul_f32", y[k], sCS, y[k])))
                d = Qf(u, ks)
                for k in range(4): th.append(Task(lambda k=k, y=y, d=d: e.valu("v_cvt_pk_bf16_f32", d[k], y[2 * k], y[2 * k + 1])))
        return th
    def d_pack_tasks(self, mb):
        e = self.e
        th = []
        for nb in range(2):
            a = accV(mb, nb)
            for q in range(2):
                idx = (mb * 2 + nb) * 2 + q
                for k in range(4):
                    t = V(32 + 4 * (idx & 1) + k)
                    th.append(Task(lambda a=a, q=q, k=k, t=t: e.valu("v_cvt_pk_bf16_f32", t, a[8 * q + 2 * k], a[8 * q + 2 * k + 1])))
                for k in range(4):
                    t = V(32 + 4 * (idx & 1) + k)
                    th.append(Task(lambda idx=idx, k=k, t=t: e.accwrite(Dpk(idx)[k], t)))
        return th
    def d_store_tasks(self, idx):
        e = self.e
        th = []
        if idx % 4 == 0: th.append(TS(lambda: e.salu("s_mov_b32", sOFF2, idx * 1024)))
        th.append(TM(lambda: e.buf_store(Dpk(idx), vST, sPD, sOFF2, (idx % 4) * 1024, self.o["dstore"]), 8))
        return th
    def s_store(self):
        e = self.e
        n = 0
        for mb in range(4):
            for nb in range(2):
                a = accV(mb, nb)
                for q in range(2):
                    d = T(4 * (n % 4), 4)
                    for k in range(4):
                        e.valu("v_cvt_pk_bf16_f32", d[k], a[8 * q + 2 * k], a[8 * q + 2 * k + 1])
                    idx = (mb * 2 + nb) * 2 + q
                    if idx % 4 == 0: e.salu("s_mov_b32", sOFF2, idx * 1024)
                    e.buf_store(d, vST, sPS, sOFF2, (idx % 4) * 1024, self.o["sstore"])
                    n += 1

    def kv_issue(self, kind, t):
        e = self.e
        toks = self.kvtok.setdefault((kind, t), [])
        base = LDS_KV + kvslot(t) + (8192 if kind == "V" else 0)
        so = sKO if kind == "K" else sVO
        th = [TS(lambda: e.salu("s_add_u32", "m0", sKVM, base))]
        for p in range(2):
            vo = vDK[p] if kind == "K" else vDV
            srd = sK if kind == "K" else sV
            th.append(TM(lambda vo=vo, srd=srd, p=p: toks.append(e.dma(vo, srd, so, p * 1024)), 8))
        th.append(TS(lambda: e.salu("s_add_u32", so, so, 8192)))
        th.append(TS(lambda: e.salu("s_and_b32", so, so, 0x1ffff)))
        return th
    def kv_setup(self):
        e = self.e
        self.kvtok = {}
        e.salu("s_lshl_b32", sKVM, sW, 11)
        if self.o["rot"]:
            e.salu("s_lshr_b32", sKO, sROT, 1)
            e.salu("s_lshl_b32", sKO, sKO, 13)
            e.salu("s_add_u32", sKO, sKO, sKVM)
        else:
            e.salu("s_mov_b32", sKO, sKVM)
        e.salu("s_mov_b32", sVO, sKO)
    def k_reads(self, t, kf=Kf):
        e = self.e
        return [TM(lambda ks=ks: e.ds_read("ds_read_b128", kf(ks), vK[ks], kvslot(t))) for ks in range(8)]
    def v_reads(self, t):
        e = self.e
        th = []
        for kk in range(2):
            for mb in range(4):
                for j in range(2):
                    th.append(TM(lambda kk=kk, mb=mb, j=j: e.ds_read("ds_read_b64_tr_b16", Vf(kk, mb).sub(2 * j, 2), vTV[mb],
                                                                       kvslot(t) + 8192 + kk * 4096 + j * 2048)))
        return th
    def qk_mfmas(self, t, czero=False, kf=Kf):
        e = self.e
        p = t & 1
        th = []
        for ks in range(8):
            for u in range(2):
                c = (0 if czero else NEG(u)) if ks == 0 else Sb(p, u)
                th.append(lambda ks=ks, u=u, c=c: e.mfma(Sb(p, u), kf(ks), Qf(u, ks), c))
        return th
    def pv_mfmas(self, t):
        e = self.e
        p = t & 1
        th = []
        for kk in range(2):
            for mb in range(4):
                for u in range(2):
                    c = 0 if (t == 0 and kk == 0) else Oacc(mb, u)
                    th.append(lambda kk=kk, mb=mb, u=u, c=c: e.mfma(Oacc(mb, u), Vf(kk, mb), Pf(p, u, kk), c))
        return th
    def sm_ops(self, t, sub=None, split=False):
        e = self.e
        p = t & 1
        pairs = []
        for kk in range(2):
            for u in range(2):
                for k2 in range(4): pairs.append((kk, u, k2))
        th = []
        def exps(n):
            kk, u, k2 = pairs[n]
            s = Sb(p, u); r0 = 8 * kk + 2 * k2
            ea, eb = vE[(2 * n) % 12], vE[(2 * n + 1) % 12]
            o = []
            if sub is not None:
                o.append(Task(lambda: e.valu("v_sub_f32", s[r0], s[r0], sub[u])))
                o.append(Task(lambda: e.valu("v_sub_f32", s[r0 + 1], s[r0 + 1], sub[u])))
            o.append(Task(lambda: e.valu("v_exp_f32", ea, s[r0]), 8))
            o.append(Task(lambda: e.valu("v_exp_f32", eb, s[r0 + 1]), 8))
            return o
        def post(n):
            kk, u, k2 = pairs[n]
            ea, eb = vE[(2 * n) % 12], vE[(2 * n + 1) % 12]
            o = []
            if kk == 0 and k2 == 0:
                o.append(Task(lambda: e.valu("v_add_f32", vTS[u], ea, eb)))
            else:
                o.append(Task(lambda: e.valu("v_add_f32", vTS[u], vTS[u], ea)))
                o.append(Task(lambda: e.valu("v_add_f32", vTS[u], vTS[u], eb)))
            o.append(Task(lambda: e.valu("v_cvt_pk_bf16_f32", Pf(p, u, kk)[k2], ea, eb)))
            return o
        if split:
            h0 = exps(0)
            for n in range(1, 8): h0 += exps(n) + post(n - 1)
            h0 += post(7)
            h1 = exps(8)
            for n in range(9, 16): h1 += exps(n) + post(n - 1)
            h1 += post(15)
            return h0, h1
        th += exps(0)
        for n in range(1, 16):
            th += exps(n); th += post(n - 1)
        th += post(15)
        return th
    def sm_check(self, t, mid=None):
        e = self.e
        p = t & 1
        e.valu("v_max_f32", vE[0], vTS[0], vTS[1])
        e.cmp("v_cmp_nge_f32", "vcc", sTHR, vE[0])
        if mid: mid()
        lab = "L_ok_%d" % t
        e.ins("s_cbranch_vccz", "salu", [], [lab], extra_uses=["vcc"])
        e.raw("s_call_b64 %s, L_slow_%d" % (sRET.t, p))
        e.label(lab)
    def rowmax(self, p, dst):
        e = self.e
        for u in range(2):
            s = Sb(p, u)
            e.valu("v_max3_f32", dst[u], s[0], s[1], s[2])
            for k in range(3, 15, 2):
                e.valu("v_max3_f32", dst[u], dst[u], s[k], s[k + 1])
            e.valu("v_max_f32", dst[u], dst[u], s[15])
        e.perm("v_permlane32_swap_b32", dst[0], dst[1])
        e.valu("v_max_f32", dst[0], dst[0], dst[1])
        e.valu("v_mov_b32", dst[1], dst[0])
        e.perm("v_permlane32_swap_b32", dst[0], dst[1])
    def slow_path(self, p):
        e = self.e
        st = e.state()
        e.label("L_slow_%d" % p)
        e.lastw, e.lastC, e.lastStore, e.pend = {}, {}, {}, {}
        e.lg, e.vm = [], []
        e.raw("s_waitcnt lgkmcnt(0)")
        e.nop(24)
        dl = [vE[0], vE[1]]; al = [vE[2], vE[3]]; tm = vE[4]
        self.rowmax(p, dl)
        for u in range(2):
            e.valu("v_max_f32", dl[u], 0, dl[u])
            e.valu("v_exp_f32", al[u], "-" + dl[u].t)
            for r in range(16):
                e.valu("v_sub_f32", NEG(u)[r], NEG(u)[r], dl[u])
                e.valu("v_sub_f32", Sb(p, u)[r], Sb(p, u)[r], dl[u])
                e.valu("v_sub_f32", Sb(p ^ 1, u)[r], Sb(p ^ 1, u)[r], dl[u])
            e.valu("v_mul_f32", vL[u], vL[u], al[u])
            for mb in range(4):
                for r in range(16):
                    e.accread(tm, Oacc(mb, u)[r])
                    e.valu("v_mul_f32", tm, tm, al[u])
                    e.accwrite(Oacc(mb, u)[r], tm)
        for th in self.sm_ops(p): th()
        e.nop(8)
        e.raw("s_setpc_b64 %s" % sRET.t)
        e.restore(st)

    def pack(self, mf, fixed, flow, lo=0, cap=24, hi=None):
        ng = len(mf)
        if hi is None: hi = ng - 1
        flow = deque((t if isinstance(t, tuple) else (t, ng + 1)) for t in flow)
        used = [sum(t.c for t in fixed[k]) for k in range(ng)]
        total = sum(t.c for t, _ in flow)
        room = sum(max(0, cap - used[k]) for k in range(lo, hi + 1))
        ratio = total / room if room else 1.0
        target = 0.0; done = 0
        for k in range(ng):
            while flow and flow[0][1] <= k:
                t, _ = flow.popleft(); done += t.c; t()
            mf[k]()
            pre = [t for t in fixed[k] if t.k != "v"]
            post = [t for t in fixed[k] if t.k == "v"]
            got = []
            if lo <= k <= hi:
                r = max(0, cap - used[k])
                target = max(target, done) if ratio > 1 else target
                target += r * min(ratio, 1.0) if ratio <= 1 else r
                while flow and (k == hi or (done + flow[0][0].c <= target + 2 and flow[0][0].c <= r)):
                    if flow[0][0].k != "v" and (got or post): break
                    t, _ = flow.popleft(); done += t.c; r -= t.c; got.append(t)
            for t in pre: t()
            for t in [x for x in got if x.k != "v"]: t()
            for t in post: t()
            for t in [x for x in got if x.k == "v"]: t()
        while flow: flow.popleft()[0]()

    def f2_extra(self):
        e = self.e
        tok = self.kvtok
        kvpre = self.kv_issue("K", 0) + self.kv_issue("V", 0) + self.kv_issue("K", 1) + self.kv_issue("V", 1)
        def extra(s):
            if s < 4: return kvpre[5 * s:5 * s + 5]
            return []
        def gapx(s):
            g = {}
            if s == 10:
                g[0] = [TS(lambda: (e.wait_tokens(tok[("K", 0)] + tok[("K", 1)] + tok[("V", 0)] + tok[("V", 1)]), e.barrier()), 8)]
            if s == 12:
                kr = self.k_reads(0)
                for j in range(8): g.setdefault(5 + j // 3, []).append(kr[j])
            if s == 13:
                g[0] = [TS(lambda: e.barrier())]
                kr = self.k_reads(1, Kf1); vr = self.v_reads(0)
                rd = kr + vr
                for j, t in enumerate(rd): g.setdefault((j * 8) // len(rd), []).append(t)
                dp = self.d_pack_tasks(0)
                for j, t in enumerate(dp): g.setdefault(4 + (j * 4) // len(dp), []).append(t)
            return g
        return extra, gapx

    def iter_fixed(self, i, base, fixed, ng, pend_l, T0):
        e = self.e
        tok = self.kvtok
        need = tok.get(("K", i + 2), []) + tok.get(("V", i + 1), [])
        fixed[base].append(TS(lambda need=need: (e.wait_tokens(need), e.barrier()), 8))
        fixed[base] += pend_l
        dm = []
        if i + 4 < 16: dm += self.kv_issue("K", i + 4)
        if i + 3 < 16: dm += self.kv_issue("V", i + 3)
        dm += self.d_store_tasks(i)
        if 8 <= i < 8 + self.o["depth"]: dm += self.tile_issue(T0 + i - 8)
        full = (ng - base) == 32
        vr = None
        if i + 2 < 16:
            for k, th in enumerate(self.k_reads(i + 2)): fixed[base + 1 + k].append(th)
            kregs = []
            for ks in range(8): kregs += Kf(ks).regs
            fixed[base + 15].append(TS(lambda kregs=kregs: e._need(kregs)))
        if i + 1 < 16:
            vr = self.v_reads(i + 1)
            if full:
                for k, th in enumerate(vr): fixed[base + 16 + (k * 12) // 16].append(th)
                vr = None
        order = [9, 10, 11, 12, 13, 14, 28, 29, 30] if full else list(range(1, 15))
        groups = []; cur = []
        for t in dm:
            cur.append(t)
            if t.k == "m": groups.append(cur); cur = []
        if cur:
            if groups: groups[-1] += cur
            else: groups.append(cur)
        for j, gtasks in enumerate(groups):
            fixed[base + order[min(len(order) - 1, j)]] += gtasks
        return vr

    def att_main(self):
        e = self.e
        tok = self.kvtok
        self.stamp("att_it_start")
        self.flush_bg()
        dl = vDL
        T0 = self.phase_T0("O")
        vregs = []
        for kk in range(2):
            for mb in range(4): vregs += Vf(kk, mb).regs
        mf = self.qk_mfmas(0, czero=True)
        fixed = [[] for _ in mf]
        dm = self.kv_issue("K", 2) + self.kv_issue("V", 2) + self.kv_issue("K", 3)
        for j, t in enumerate(dm): fixed[1 + (j * 14) // len(dm)].append(t)
        self.pack(mf, fixed, self.d_pack_tasks(1) + self.d_pack_tasks(2) + self.d_pack_tasks(3))
        self.stamp("att_it_qk0")
        mf = self.qk_mfmas(1, czero=True, kf=Kf1) + self.pv_mfmas(0) + self.qk_mfmas(2)
        ng = len(mf)
        fixed = [[] for _ in mf]
        fixed[2].append(Task(lambda: self.rowmax(0, dl), 104))
        h0, h1 = self.sm_ops(0, sub=dl, split=True)
        flow = [(t, 16) for t in h0] + [(t, 24) for t in h1]
        flow += [(Task(lambda u=u: e.valu("v_mov_b32", vL[u], vTS[u])), 30) for u in range(2)]
        for u in range(2):
            for r in range(16): flow.append((Task(lambda u=u, r=r: e.valu("v_sub_f32", NEG(u)[r], 0, dl[u])), 32))
        flow += self.sm_ops(1, sub=dl)
        self.iter_fixed(0, 16, fixed, ng, [], T0)
        self.pack(mf, fixed, flow, lo=3, hi=ng - 2)
        self.sm_check(1, mid=lambda: e._need(vregs))
        pend_l = [Task(lambda u=u: e.valu("v_add_f32", vL[u], vL[u], vTS[u])) for u in range(2)]
        for i in range(1, 16):
            e.comment("---- attention iteration %d" % i)
            if i < 13: self.stamp("att_it%d" % i)
            mf = self.pv_mfmas(i) + (self.qk_mfmas(i + 2) if i + 2 < 16 else [])
            ng = len(mf)
            fixed = [[] for _ in mf]
            e._need(vregs)
            vr = self.iter_fixed(i, 0, fixed, ng, pend_l, T0)
            flow = self.sm_ops(i + 1) if i + 1 < 16 else []
            self.pack(mf, fixed, flow, lo=self.o.get("smlo", 1), hi=ng - 2, cap=self.o.get("cap", 24))
            if vr:
                for th in vr: th()
            if i + 1 < 16:
                self.sm_check(i + 1, mid=lambda: e._need(vregs))
                pend_l = [Task(lambda u=u: e.valu("v_add_f32", vL[u], vL[u], vTS[u])) for u in range(2)]
            else: pend_l = []

    def att_epilogue(self):
        e = self.e
        e.perm("v_permlane32_swap_b32", vL[0], vL[1])
        e.valu("v_add_f32", vL[0], vL[0], vL[1])
        e.valu("v_mov_b32", vL[1], vL[0])
        e.perm("v_permlane32_swap_b32", vL[0], vL[1])
        for u in range(2): e.valu("v_rcp_f32", vL[u], vL[u])
        ow = vE[0]
        e.salu("s_lshl_b32", sT0, sW, 14)
        e.valu("v_add_u32", ow, sT0, vL16)
        n = 0
        for ks in range(8):
            for u in range(2):
                o = Oacc(ks >> 1, u).sub(8 * (ks & 1), 8)
                y = [V(128 + (n & 1) * 8 + k) for k in range(8)]
                d = V(144 + (n & 1) * 4, 4)
                for k in range(8): e.accread(y[k], o[k])
                for k in range(8): e.valu("v_mul_f32", y[k], y[k], vL[u])
                for k in range(4): e.valu("v_cvt_pk_bf16_f32", d[k], y[2 * k], y[2 * k + 1])
                e.ds_write("ds_write_b128", ow, d, (2 * ks + u) * 1024)
                n += 1
        e.wait_all(vm=False, lg=True)
        e.barrier()

    def main_kernel(self):
        e = self.e
        e.label("main_kernel")
        self.stamp("start") if False else None
        self.prologue()
        self.stamp("ln_done")
        st = e.state(); tiles0 = {k: list(v) for k, v in self.tiles.items()}
        e.raw("s_cmp_eq_u32 %s, 1" % sSHORT.t)
        e.raw("s_cbranch_scc1 L_f1b")
        self.gemm("F1", 4, accV)
        e.wait_all(vm=False, lg=True)
        vm_a = len(e.vm)
        e.raw("s_branch L_f1_join")
        e.restore(st); self.tiles = tiles0
        e.label("L_f1b")
        self.gemm("F1", 2, accV)
        e.wait_all(vm=False, lg=True)
        assert len(e.vm) == vm_a, (len(e.vm), vm_a)
        e.label("L_f1_join")
        e.lastw, e.lastC, e.lastStore = {}, {}, {}
        e.nop(12)
        self.stamp("f1")
        if self.o["bg"]: self.bg.extend(self.f1_epilogue_tasks())
        else:
            for t in self.f1_epilogue_tasks(): t()
        self.gemm("Q", 4, accA)
        self.flush_bg()
        self.kv_setup()
        self.stamp("q")
        e.wait_all(vm=False, lg=True)
        e.barrier()
        if self.o["bg"]: self.bg.extend(self.q_epilogue_tasks())
        else:
            for t in self.q_epilogue_tasks(): t()
        extra, gapx = self.f2_extra()
        self.gemm("F2", 4, accV, issue_limit=self.phase_T0("O"), extra=extra, gapx=gapx, bgbudget=16)
        self.stamp("f2")
        self.flush_bg()
        self.stamp("f2_flush")
        self.att_main()
        self.stamp("att_main")
        self.att_epilogue()
        self.stamp("att_done")
        self.gemm("O", 4, accV)
        self.stamp("o_gemm")
        self.s_store()
        e.wait_all(vm=True, lg=True)
        self.stamp("end")
        if self.diag: self.write_stamps()
        e.label("L_end")
        e.raw("s_endpgm")
        self.slow_path(0)
        self.slow_path(1)

    def write_stamps(self):
        e = self.e
        e.raw("s_waitcnt lgkmcnt(0)")
        e.salu("s_add_u32", S(4), sWSP[0], WS_DBG); e.salu("s_addc_u32", S(5), sWSP[1], 0)
        e.salu("s_mov_b32", S(6), 1 << 20); e.salu("s_mov_b32", S(7), 0x20000)
        e.salu("s_lshl_b32", sT0, S(2), 2); e.salu("s_add_u32", sT0, sT0, sW); e.salu("s_lshl_b32", sT0, sT0, 7)
        e.valu("v_mov_b32", T(1), sT0)
        for i in range(self.nstamp):
            e.valu("v_mov_b32", T(0), S(STAMP0 + 2 * i))
            e.buf_store(T(0), T(1), S(4, 4), 0, 4 * i)
        e.raw("s_memrealtime s[90:91]")
        e.raw("s_waitcnt lgkmcnt(0)")
        for i, r in enumerate((S(92), S(90), S(94))):
            e.valu("v_mov_b32", T(0), r)
            e.buf_store(T(0), T(1), S(4, 4), 0, 4 * (29 + i))
        if self.o.get("dbgout") is not None:
            e.raw("s_cmp_eq_u32 s2, %d" % self.o["dbgout"])
            e.raw("s_cbranch_scc0 L_nodbg")
            e.raw("s_cmp_eq_u32 %s, 0" % sW.t)
            e.raw("s_cbranch_scc0 L_nodbg")
            e.raw("s_load_dwordx2 s[8:9], s[0:1], 80")
            e.raw("s_waitcnt lgkmcnt(0)")
            e.salu("s_mov_b32", S(10), 256); e.salu("s_mov_b32", S(11), 0x20000)
            e.valu("v_mov_b32", T(1), 0)
            prev = S(94)
            for i in range(self.nstamp):
                e.salu("s_sub_u32", sT0, S(STAMP0 + 2 * i), prev)
                e.valu("v_mov_b32", T(0), sT0)
                e.buf_store(T(0), T(1), S(8, 4), 0, 4 * i)
                prev = S(STAMP0 + 2 * i)
            e.salu("s_sub_u32", sT0, S(90), S(92))
            e.valu("v_mov_b32", T(0), sT0)
            e.buf_store(T(0), T(1), S(8, 4), 0, 4 * self.nstamp)
            e.label("L_nodbg")
        e.wait_all()

from gen import Gen as Gen1, kd
HEADER = """; Fused LayerNorm + ReGLU FFN + sliding-window GQA attention + gated residual (gfx950).
; @launch kernel=main_kernel grid=(256,1,1) block=(256,1,1) lds=163840
; @launch kernel=final_kernel grid=(256,1,1) block=(256,1,1) lds=0
.amdgcn_target "amdgcn-amd-amdhsa--gfx950"
.text
"""
def build(diag=False, opt=None):
    g = Gen(diag=diag, opt=opt)
    g.main_kernel()
    main = g.e.text()
    stats = dict(g.e.stats)
    names = g.stamp_names
    fin = Gen1().final_kernel(dbgcopy=(opt or {}).get('dbgout'))
    s = HEADER
    s += ".globl main_kernel\n.p2align 8\n.type main_kernel,@function\n" + main
    s += ".globl final_kernel\n.p2align 8\n.type final_kernel,@function\n" + fin
    s += '.section .rodata,"a"\n.p2align 6\n' + kd("main_kernel", 512, 256) + ".p2align 6\n" + kd("final_kernel", 192, 192)
    return s, stats, names

if __name__ == "__main__":
    diag = "--diag" in sys.argv
    opt = {}
    for a in sys.argv[1:]:
        if a.startswith("--") and "=" in a:
            k, v = a[2:].split("=")
            opt[k] = {"True": True, "False": False}.get(v, int(v) if v.lstrip("-").isdigit() else v)
    out = [a for a in sys.argv[1:] if not a.startswith("--")]
    s, stats, names = build(diag, opt)
    path = out[0] if out else "cdna_kernels/%s.s" % NAME
    open(path, "w").write(s)
    print(path, len(s), "bytes", stats, names)
```

```python
import sys, struct, math
from emit import E, V, A, S, R

NAME = "recurrent_scan__sliding_block_cached__glu_gated_reglu__prompt"

LDS_XN   = 0
LDS_H    = 65536
LDS_RING = 98304
LDS_KV   = 32768
KVSLOT   = [32768, 49152, 0, 16384]
WS_D     = 0
WS_S     = 16 << 20
WS_DBG   = 40 << 20
CSCALE   = (128 ** -0.5) * math.log2(math.e)
THR      = float(2 ** 24)

sX, sK, sV, sWQ, sWO, sWG, sWU, sWD, sPD, sPS = [S(4 * i + 4, 4) for i in range(10)]
sG, sRB, sW, sRING, sOFF, sT0, sTHR, sT1, sT2, sOFF2 = [S(44 + i) for i in range(10)]
sONES = S(54)
sKVM  = S(55)
sRET  = S(60, 2)
sSTAMP = 88

vTID, vLANE, vL16, vL16H = V(0), V(1), V(2), V(3)
vTC = [V(4 + i) for i in range(4)]
vTV = [V(8 + i) for i in range(4)]
vK  = [V(12 + i) for i in range(8)]
vDW = [V(20 + i) for i in range(4)]
vDK = [V(24), V(25)]
vDV = V(26)
vST = V(27)
vTN = [V(28 + i) for i in range(4)]
vTF = [V(32 + i) for i in range(4)]
vDG = [V(36), V(37)]
vDU = [V(38), V(39)]
vDQ = [V(40 + i) for i in range(4)]
vHW = V(44)
TMP = 46
def T(i, n=1): return V(TMP + i, n)
QF  = 64
def Qf(u, ks): return V(QF + (u * 8 + ks) * 4, 4)
ACC = 128
def acc(mb, nb): return V(ACC + (mb * 2 + nb) * 16, 16)
def Sb(p, u): return V(128 + (p * 2 + u) * 16, 16)
def NEG(u): return V(192 + u * 16, 16)
def Pf(p, u, kk): return V(224 + ((p * 2 + u) * 2 + kk) * 4, 4)
def Oacc(mb, u): return A((mb * 2 + u) * 16, 16)
def Af(buf, mb): return A(128 + buf * 16 + mb * 4, 4)
def Bf(buf, nb): return A(160 + buf * 8 + nb * 4, 4)
def Kf(ks): return A(192 + 4 * ks, 4)
def Vf(kk, mb): return A(224 + (kk * 4 + mb) * 4, 4)
vL = [V(28), V(29)]
vTS = [V(30), V(31)]
vE = [V(32 + i) for i in range(12)]

class Gen:
    def __init__(self, diag=False, dbg=None):
        self.e = E()
        self.diag = diag
        self.dbg = dbg
        self.nstamp = 0
        self.tiles = {}
    def stamp(self, name):
        if not self.diag: return
        e = self.e
        r = S(sSTAMP - 24 + 2 * self.nstamp, 2) if False else S(62 + 2 * self.nstamp, 2)
        e.comment("stamp " + name)
        e.raw("s_memtime %s" % r.t)
        e.wait_all(vm=False, lg=True)
        self.nstamp += 1
        self.stamp_names = getattr(self, "stamp_names", []) + [name]
    def srd(self, dst, ptr, off_lo, size, off_reg=None):
        e = self.e
        if off_reg is not None:
            e.salu("s_add_u32", dst[0], ptr[0], off_reg)
            e.salu("s_addc_u32", dst[1], ptr[1], 0)
            if off_lo:
                e.salu("s_add_u32", dst[0], dst[0], off_lo)
                e.salu("s_addc_u32", dst[1], dst[1], 0)
        elif off_lo:
            e.salu("s_add_u32", dst[0], ptr[0], off_lo)
            e.salu("s_addc_u32", dst[1], ptr[1], 0)
        else:
            e.salu("s_mov_b32", dst[0], ptr[0])
            e.salu("s_mov_b32", dst[1], ptr[1])
        e.salu("s_mov_b32", dst[2], size)
        e.salu("s_mov_b32", dst[3], 0x20000)

    def prologue(self):
        e = self.e
        e.raw("s_cmp_ge_u32 s2, 256")
        e.raw("s_cbranch_scc1 L_end")
        e.raw("s_load_dwordx16 s[64:79], s[0:1], 0")
        e.raw("s_load_dwordx8 s[80:87], s[0:1], 64")
        e.salu("s_and_b32", sG, S(2), 7)
        e.salu("s_lshr_b32", sRB, S(2), 3)
        e.valu("v_and_b32", vLANE, 63, vTID)
        e.valu("v_lshrrev_b32", T(0), 6, vTID)
        e.rdlane(sW, T(0))
        l = vLANE
        r4, c16, g1, hh, c4 = T(1), T(2), T(3), T(4), T(5)
        e.valu("v_and_b32", c16, 15, l)
        e.valu("v_lshrrev_b32", r4, 4, l)
        e.salu("s_lshl_b32", sT0, sRB, 6)
        e.salu("s_lshl_b32", sT1, sW, 4)
        e.salu("s_add_u32", sT0, sT0, sT1)
        e.valu("v_add_u32", T(6), sT0, c16)
        e.valu("v_lshlrev_b32", T(6), 10, T(6))
        e.valu("v_lshl_add_u32", T(6), r4, 4, T(6))
        e.raw("s_waitcnt lgkmcnt(0)")
        px, pk, pv, pwq, pwo, pwg, pwu = S(64, 2), S(66, 2), S(68, 2), S(70, 2), S(72, 2), S(76, 2), S(78, 2)
        pwd, pout, pdbg, pws = S(80, 2), S(82, 2), S(84, 2), S(86, 2)
        self.srd(sX, px, 0, 2097152)
        for i in range(16):
            e.buf_load(V(128 + 4 * i, 4), T(6), sX, 0, 64 * i)
        e.salu("s_lshl_b32", sT1, sG, 19)
        self.srd(sK, pk, 1536 * 256, 131072, sT1)
        self.srd(sV, pv, 1536 * 256, 131072, sT1)
        self.srd(sWQ, pwq, 0, 4194304)
        e.salu("s_lshl_b32", sT1, sG, 19)
        self.srd(sWO, pwo, 0, 524288, sT1)
        self.srd(sWG, pwg, 0, 1835008)
        self.srd(sWU, pwu, 0, 1835008)
        e.salu("s_mul_i32", sT1, sG, 224 * 1024)
        self.srd(sWD, pwd, 0, 224 * 1024, sT1)
        e.salu("s_lshl_b32", sT1, S(2), 16)
        self.srd(sPD, pws, WS_D, 65536, sT1)
        self.srd(sPS, pws, WS_S, 65536, sT1)
        if self.diag:
            e.salu("s_mov_b32", S(58), pws[0]); e.salu("s_mov_b32", S(59), pws[1])
        e.salu("s_mov_b32", sONES, 0x3f803f80)
        e.salu("s_lshl_b32", sRING, sW, 14)
        e.salu("s_add_u32", sRING, sRING, LDS_RING)
        e.salu("s_mov_b32", sTHR, THR)
        a, b, c = T(7), T(8), T(9)
        e.valu("v_lshlrev_b32", vL16, 4, l)
        e.valu("v_add_u32", vL16H, LDS_H, vL16)
        e.valu("v_lshlrev_b32", a, 2, r4)
        e.valu("v_xor_b32", a, a, c16)
        e.valu("v_lshlrev_b32", a, 4, a)
        e.valu("v_lshl_add_u32", vDV, r4, 8, a)
        e.salu("s_lshl_b32", sT1, sW, 8)
        e.valu("v_lshl_add_u32", b, r4, 10, a)
        e.valu("v_add_u32", vDW[0], sT1, b)
        for p in range(1, 4):
            e.valu("v_add_u32", vDW[p], p * 3072, vDW[0])
        e.salu("s_lshl_b32", sT2, sG, 10)
        e.salu("s_add_u32", sT1, sT1, sT2)
        e.valu("v_lshl_add_u32", b, r4, 13, a)
        e.valu("v_add_u32", vDQ[0], sT1, b)
        for p in range(1, 4):
            e.valu("v_add_u32", vDQ[p], p * (32768 - 1024), vDQ[0])
        e.salu("s_lshl_b32", sT1, sW, 3)
        for p in range(2):
            e.valu("v_add_u32", b, sT1, r4)
            if p: e.valu("v_add_u32", b, 4, b)
            e.valu("v_and_b32", b, 15, b)
            e.valu("v_xor_b32", b, b, c16)
            e.valu("v_lshlrev_b32", b, 4, b)
            e.valu("v_lshl_add_u32", vDK[p], r4, 8, b)
        r8, c8 = T(10), T(11)
        e.valu("v_lshrrev_b32", r8, 3, l)
        e.valu("v_and_b32", c8, 7, l)
        e.valu("v_and_b32", a, 2, r8)
        e.valu("v_xor_b32", a, a, c8)
        e.salu("s_mul_i32", sT1, sG, 448)
        e.salu("s_lshl_b32", sT2, sW, 7)
        e.raw("s_cmp_eq_u32 %s, 3" % sW.t)
        e.raw("s_cselect_b32 %s, 352, %s" % (sT2.t, sT2.t))
        e.salu("s_add_u32", sT1, sT1, sT2)
        e.salu("s_mov_b32", sT2, 3584)
        e.valu("v_mul_lo_u32", b, r8, sT2)
        e.valu("v_add_u32", b, sT1, b)
        e.raw("s_cmp_ge_u32 %s, 2" % sW.t)
        e.raw("s_cselect_b32 %s, 6, 8" % sT2.t)
        big = T(12)
        e.valu("v_mov_b32", big, 0x40000000)
        for (dst, x) in ((vDG, 0), (vDU, 4)):
            e.valu("v_xor_b32", c, x, a)
            e.cmp("v_cmp_gt_u32", "vcc", sT2, c)
            e.valu("v_lshl_add_u32", c, c, 4, b)
            e.cnd(dst[0], big, c)
            e.valu("v_add_u32", dst[1], 8 * 3584 - 1024, dst[0])
        rr = T(13)
        e.valu("v_and_b32", g1, 1, r4)
        e.valu("v_lshrrev_b32", hh, 5, l)
        e.valu("v_bfe_u32", rr, l, 2, 2)
        e.valu("v_and_b32", c4, 3, l)
        e.valu("v_lshl_add_u32", a, hh, 2, rr)
        e.valu("v_lshlrev_b32", a, 8, a)
        e.valu("v_lshl_add_u32", a, g1, 5, a)
        e.valu("v_lshl_add_u32", b, c4, 3, a)
        for mb in range(4):
            e.valu("v_xor_b32", c, mb, rr)
            e.valu("v_lshl_add_u32", c, c, 6, b)
            e.valu("v_add_u32", vTC[mb], sRING, c)
            e.valu("v_add_u32", vTV[mb], LDS_KV, c)
        e.valu("v_lshl_add_u32", a, hh, 3, rr)
        e.valu("v_lshlrev_b32", a, 8, a)
        e.valu("v_lshl_add_u32", a, g1, 5, a)
        e.valu("v_lshrrev_b32", b, 1, c4)
        e.valu("v_and_b32", c, 1, c4)
        e.valu("v_lshl_or_b32", b, c, 1, b)
        e.valu("v_lshl_add_u32", b, b, 3, a)
        for mb in range(4):
            e.valu("v_xor_b32", c, mb, rr)
            e.valu("v_lshl_add_u32", c, c, 6, b)
            e.valu("v_add_u32", vTN[mb], sRING, c)
        e.valu("v_lshl_add_u32", a, hh, 3, rr)
        e.valu("v_lshlrev_b32", a, 7, a)
        e.valu("v_lshl_add_u32", a, g1, 11, a)
        e.valu("v_lshl_add_u32", a, c4, 3, a)
        e.valu("v_lshrrev_b32", b, 1, rr)
        e.valu("v_lshl_or_b32", b, g1, 1, b)
        for mb in range(4):
            e.valu("v_xor_b32", c, mb, b)
            e.valu("v_lshl_add_u32", c, c, 5, a)
            e.valu("v_add_u32", vTF[mb], sRING, c)
        e.valu("v_and_b32", a, 31, l)
        e.valu("v_and_b32", b, 15, l)
        e.valu("v_xor_b32", b, b, hh)
        e.valu("v_lshlrev_b32", b, 4, b)
        e.valu("v_lshlrev_b32", a, 8, a)
        e.valu("v_add_u32", a, LDS_KV, a)
        for ks in range(8):
            e.valu("v_xor_b32", c, ks * 32, b)
            e.valu("v_add_u32", vK[ks], a, c)
        e.salu("s_lshl_b32", sT1, sW, 14)
        e.valu("v_add_u32", vST, sT1, vL16)
        e.salu("s_lshl_b32", sT1, sW, 13)
        e.raw("s_cmp_eq_u32 %s, 3" % sW.t)
        e.raw("s_cselect_b32 %s, %d, %s" % (sT1.t, 11 * 2048, sT1.t))
        e.valu("v_add_u32", vHW, sT1, vL16H)
        xw = T(16)
        e.salu("s_lshr_b32", sT1, sW, 1)
        e.salu("s_lshl_b32", sT1, sT1, 10)
        e.salu("s_and_b32", sT2, sW, 1)
        e.salu("s_lshl_b32", sT2, sT2, 8)
        e.salu("s_add_u32", sT1, sT1, sT2)
        e.valu("v_lshrrev_b32", a, 1, r4)
        e.valu("v_lshlrev_b32", a, 11, a)
        e.valu("v_and_b32", b, 1, r4)
        e.valu("v_lshl_add_u32", a, b, 9, a)
        e.valu("v_lshl_add_u32", a, c16, 4, a)
        e.valu("v_add_u32", xw, sT1, a)
        self.xw = xw
        for t in range(3):
            for th in self.tile_issue(t): th()
        self.layernorm()

    def layernorm(self):
        e = self.e
        x = lambda i: V(128 + 4 * i, 4)
        s1a, s1b, s2a, s2b = T(0), T(1), T(2), T(3)
        for r in (s1a, s1b, s2a, s2b): e.valu("v_mov_b32", r, 0)
        for i in range(16):
            for k in range(4):
                xr = x(i)[k]
                e.valu("v_dot2_f32_bf16", s1a if k & 1 else s1b, xr, sONES, s1a if k & 1 else s1b)
                e.valu("v_dot2_f32_bf16", s2a if k & 1 else s2b, xr, xr, s2a if k & 1 else s2b)
        e.nop(3)
        e.valu("v_add_f32", s1a, s1a, s1b)
        e.valu("v_add_f32", s2a, s2a, s2b)
        e.perm("v_permlane32_swap_b32", s1a, s2a)
        e.valu("v_add_f32", s1a, s1a, s2a)
        e.valu("v_mov_b32", s2a, s1a)
        e.perm("v_permlane16_swap_b32", s1a, s2a)
        e.valu("v_add_f32", s1a, s1a, s2a)
        e.valu("v_mov_b32", s2a, s1a)
        e.perm("v_permlane32_swap_b32", s1a, s2a)
        mean, rstd, shift = T(4), T(5), T(6)
        e.valu("v_mul_f32", mean, 1.0 / 512, s1a)
        e.valu("v_mul_f32", s2a, 1.0 / 512, s2a)
        e.valu("v_fma_f32", s2a, "-" + mean.t, mean, s2a)
        e.e_uses = None
        e.valu("v_max_f32", s2a, 0, s2a)
        e.valu("v_add_f32", s2a, 1e-5, s2a)
        e.valu("v_rsq_f32", rstd, s2a)
        e.valu("v_mul_f32", shift, mean, rstd)
        e.valu("v_sub_f32", shift, 0, shift)
        for i in range(16):
            xi = x(i)
            y = [T(7 + k) for k in range(8)]
            for k in range(4):
                e.valu("v_lshlrev_b32", y[2 * k], 16, xi[k])
                e.valu("v_and_b32", y[2 * k + 1], 0xffff0000, xi[k])
            for k in range(8):
                e.valu("v_fma_f32", y[k], y[k], rstd, shift)
            for k in range(4):
                e.valu("v_cvt_pk_bf16_f32", xi[k], y[2 * k], y[2 * k + 1])
            e.ds_write("ds_write_b128", self.xw, xi, i * 4096)
        e.wait_all(vm=False, lg=True)
        e.barrier()

    def tile_info(self, T_):
        if T_ < 32: return ("F1", T_)
        if T_ < 46: return ("F2", T_ - 32)
        if T_ < 78: return ("Q", T_ - 46)
        if T_ < 110: return ("O", T_ - 78)
        return None
    def tile_issue(self, T_):
        info = self.tile_info(T_)
        if info is None: return []
        e = self.e
        ph, s = info
        slot = T_ % 4
        toks = self.tiles.setdefault(T_, [])
        th = []
        def m0(off): return lambda: e.salu("s_add_u32", "m0", sRING, off)
        def so(v): return lambda: e.salu("s_mov_b32", sOFF, v)
        def d(vo, srd, off): return lambda: toks.append(e.dma(vo, srd, sOFF, off))
        if ph == "F1":
            th += [so(s * 16 * 3584), m0(slot * 4096), d(vDG[0], sWG, 0), d(vDG[1], sWG, 1024),
                   m0(slot * 4096 + 2048), d(vDU[0], sWU, 0), d(vDU[1], sWU, 1024)]
        else:
            srd, va, rs = {"F2": (sWD, vDW, 1024), "Q": (sWQ, vDQ, 8192), "O": (sWO, vDW, 1024)}[ph]
            th += [so(s * 16 * rs), m0(slot * 4096)] + [d(va[p], srd, p * 1024) for p in range(4)]
        return th

    def gemm(self, ph, T0, nsteps, nmb, accf, first_zero=True, issue_limit=None, bg=None):
        e = self.e
        def a_reads(T_, buf):
            slot = T_ % 4
            th = []
            for mb in range(nmb):
                for j in range(2):
                    if ph == "F1": addr, off = vTF[mb], slot * 4096 + j * 512
                    elif ph == "Q": addr, off = vTN[mb], slot * 4096 + j * 1024
                    else: addr, off = vTC[mb], slot * 4096 + j * 2048
                    dst = Af(buf, mb).sub(2 * j, 2)
                    th.append(lambda addr=addr, off=off, dst=dst: e.ds_read("ds_read_b64_tr_b16", dst, addr, off))
            return th
        def b_reads(s, buf):
            th = []
            for nb in range(2):
                if ph in ("F1", "Q"): addr, off = vL16, (2 * s + nb) * 1024
                elif ph == "F2": addr, off = vL16H, (2 * s + nb) * 1024
                else:
                    addr, off = (vL16, (2 * s + nb) * 1024) if s < 16 else (vL16H, (2 * (s - 16) + nb) * 1024)
                th.append(lambda addr=addr, off=off, nb=nb: e.ds_read("ds_read_b128", Bf(buf, nb), addr, off))
            return th
        e.wait_tokens(self.tiles[T0])
        br = b_reads(0, 0); ar = a_reads(T0, 0)
        for th in [ar[0], ar[1], br[0], br[1]] + ar[2:]: th()
        for s in range(nsteps):
            T_ = T0 + s
            buf = s & 1
            fill = []
            if s + 1 < nsteps:
                ar = a_reads(T_ + 1, buf ^ 1); br = b_reads(s + 1, buf ^ 1)
                reads = [ar[0], ar[1], br[0], br[1]] + ar[2:]
                reads[0] = (lambda f=reads[0], T1=T_ + 1: (e.wait_tokens(self.tiles[T1]), f()))
            else: reads = []
            nxt = T_ + 3
            dm = self.tile_issue(nxt) if (issue_limit is None or nxt < issue_limit) else []
            nm = nmb * 2
            gaps = [[] for _ in range(nm)]
            for i, th in enumerate(reads): gaps[min(nm - 1, (i * nm) // max(1, len(reads)))].append(th)
            for i, th in enumerate(dm): gaps[min(nm - 1, (i * nm) // max(1, len(dm)))].append(th)
            k = 0
            for mb in range(nmb):
                for nb in range(2):
                    c = 0 if (s == 0 and first_zero) else accf(mb, nb)
                    e.mfma(accf(mb, nb), Af(buf, mb), Bf(buf, nb), c)
                    for th in gaps[k]: th()
                    if bg: bg(k)
                    k += 1

    def f1_epilogue(self, nmb):
        e = self.e
        for mb in range(nmb):
            for nb in range(2):
                a = acc(mb, nb)
                for k in range(8):
                    e.valu("v_max_f32", a[k], 0, a[k])
                for k in range(8):
                    e.valu("v_mul_f32", a[k], a[k], a[8 + k])
                d = T(0, 4) if (mb * 2 + nb) & 1 else T(4, 4)
                for k in range(4):
                    e.valu("v_cvt_pk_bf16_f32", d[k], a[2 * k], a[2 * k + 1])
                e.ds_write("ds_write_b128", vHW, d, (2 * mb + nb) * 1024)

    def partial_store(self, srd):
        e = self.e
        n = 0
        for mb in range(4):
            for nb in range(2):
                a = acc(mb, nb)
                for q in range(2):
                    d = T(0, 4) if n & 1 else T(4, 4)
                    for k in range(4):
                        e.valu("v_cvt_pk_bf16_f32", d[k], a[8 * q + 2 * k], a[8 * q + 2 * k + 1])
                    idx = (mb * 2 + nb) * 2 + q
                    if idx % 4 == 0: e.salu("s_mov_b32", sOFF2, idx * 1024)
                    e.buf_store(d, vST, srd, sOFF2, (idx % 4) * 1024, "sc1")
                    n += 1

    def q_epilogue(self):
        e = self.e
        e.salu("s_mov_b32", sT0, CSCALE)
        for ks in range(8):
            for u in range(2):
                a = acc(ks >> 1, u)
                o = 8 * (ks & 1)
                for k in range(8):
                    e.valu("v_mul_f32", a[o + k], sT0, a[o + k])
                d = Qf(u, ks)
                for k in range(4):
                    e.valu("v_cvt_pk_bf16_f32", d[k], a[o + 2 * k], a[o + 2 * k + 1])

    def kv_issue(self, kind, t):
        e = self.e
        toks = self.kvtok.setdefault((kind, t), [])
        base = LDS_KV + KVSLOT[t % 4] + (8192 if kind == "V" else 0)
        th = [lambda: e.salu("s_add_u32", "m0", sKVM, base), lambda: e.salu("s_add_u32", sOFF, sT2, t * 8192)]
        for p in range(2):
            vo = vDK[p] if kind == "K" else vDV
            srd = sK if kind == "K" else sV
            th.append(lambda vo=vo, srd=srd, p=p: toks.append(e.dma(vo, srd, sOFF, p * 1024)))
        return th
    def k_reads(self, t):
        e = self.e
        return [(lambda ks=ks: e.ds_read("ds_read_b128", Kf(ks), vK[ks], KVSLOT[t % 4])) for ks in range(8)]
    def v_reads(self, t):
        e = self.e
        th = []
        for kk in range(2):
            for mb in range(4):
                for j in range(2):
                    th.append(lambda kk=kk, mb=mb, j=j: e.ds_read("ds_read_b64_tr_b16", Vf(kk, mb).sub(2 * j, 2), vTV[mb],
                                                                  KVSLOT[t % 4] + 8192 + kk * 4096 + j * 2048))
        return th
    def qk_mfmas(self, t, czero=False):
        e = self.e
        p = t & 1
        th = []
        for ks in range(8):
            for u in range(2):
                c = (0 if czero else NEG(u)) if ks == 0 else Sb(p, u)
                th.append(lambda ks=ks, u=u, c=c: e.mfma(Sb(p, u), Kf(ks), Qf(u, ks), c))
        return th
    def pv_mfmas(self, t):
        e = self.e
        p = t & 1
        th = []
        for kk in range(2):
            for mb in range(4):
                for u in range(2):
                    c = 0 if (t == 0 and kk == 0) else Oacc(mb, u)
                    th.append(lambda kk=kk, mb=mb, u=u, c=c: e.mfma(Oacc(mb, u), Vf(kk, mb), Pf(p, u, kk), c))
        return th
    def sm_ops(self, t, sub=None):
        e = self.e
        p = t & 1
        th = []
        n = 0
        for kk in range(2):
            for u in range(2):
                s = Sb(p, u)
                for k2 in range(4):
                    r0 = 8 * kk + 2 * k2
                    ea, eb = vE[(2 * n) % 12], vE[(2 * n + 1) % 12]
                    n += 1
                    if sub is not None:
                        th.append(lambda s=s, r0=r0, u=u: e.valu("v_sub_f32", s[r0], s[r0], sub[u]))
                        th.append(lambda s=s, r0=r0, u=u: e.valu("v_sub_f32", s[r0 + 1], s[r0 + 1], sub[u]))
                    th.append(lambda s=s, r0=r0, ea=ea: e.valu("v_exp_f32", ea, s[r0]))
                    th.append(lambda s=s, r0=r0, eb=eb: e.valu("v_exp_f32", eb, s[r0 + 1]))
                    first = (kk == 0 and k2 == 0)
                    if first:
                        th.append(lambda ea=ea, eb=eb, u=u: e.valu("v_add_f32", vTS[u], ea, eb))
                    else:
                        th.append(lambda ea=ea, u=u: e.valu("v_add_f32", vTS[u], vTS[u], ea))
                        th.append(lambda eb=eb, u=u: e.valu("v_add_f32", vTS[u], vTS[u], eb))
                    th.append(lambda ea=ea, eb=eb, u=u, kk=kk, k2=k2: e.valu("v_cvt_pk_bf16_f32", Pf(p, u, kk)[k2], ea, eb))
        return self.reorder_sm(th)
    def reorder_sm(self, th):
        return th
    def sm_check(self, t):
        e = self.e
        p = t & 1
        e.valu("v_max_f32", vE[0], vTS[0], vTS[1])
        e.cmp("v_cmp_nge_f32", "vcc", sTHR, vE[0])
        lab = "L_ok_%d" % t
        e.ins("s_cbranch_vccz", "salu", [], [lab], extra_uses=["vcc"])
        e.raw("s_call_b64 %s, L_slow_%d" % (sRET.t, p))
        e.label(lab)
        for u in range(2):
            if t == 0: e.valu("v_mov_b32", vL[u], vTS[u])
            else: e.valu("v_add_f32", vL[u], vL[u], vTS[u])
    def rowmax(self, p, dst):
        e = self.e
        for u in range(2):
            s = Sb(p, u)
            e.valu("v_max3_f32", dst[u], s[0], s[1], s[2])
            for k in range(3, 15, 2):
                e.valu("v_max3_f32", dst[u], dst[u], s[k], s[k + 1])
            e.valu("v_max_f32", dst[u], dst[u], s[15])
        e.perm("v_permlane32_swap_b32", dst[0], dst[1])
        e.valu("v_max_f32", dst[0], dst[0], dst[1])
        e.valu("v_mov_b32", dst[1], dst[0])
        e.perm("v_permlane32_swap_b32", dst[0], dst[1])
    def slow_path(self, p):
        e = self.e
        st = e.state()
        e.label("L_slow_%d" % p)
        e.lastw, e.lastC, e.lastStore, e.pend = {}, {}, {}, {}
        e.lg, e.vm = [], []
        e.raw("s_waitcnt lgkmcnt(0)")
        e.nop(24)
        dl = [vE[0], vE[1]]; al = [vE[2], vE[3]]; tm = vE[4]
        self.rowmax(p, dl)
        for u in range(2):
            e.valu("v_max_f32", dl[u], 0, dl[u])
            e.valu("v_exp_f32", al[u], "-" + dl[u].t)
            for r in range(16):
                e.valu("v_sub_f32", NEG(u)[r], NEG(u)[r], dl[u])
                e.valu("v_sub_f32", Sb(p, u)[r], Sb(p, u)[r], dl[u])
                e.valu("v_sub_f32", Sb(p ^ 1, u)[r], Sb(p ^ 1, u)[r], dl[u])
            e.valu("v_mul_f32", vL[u], vL[u], al[u])
            for mb in range(4):
                for r in range(16):
                    e.accread(tm, Oacc(mb, u)[r])
                    e.valu("v_mul_f32", tm, tm, al[u])
                    e.accwrite(Oacc(mb, u)[r], tm)
        for th in self.sm_ops(p): th()
        e.nop(8)
        e.raw("s_setpc_b64 %s" % sRET.t)
        e.restore(st)

    def attention(self):
        e = self.e
        self.kvtok = {}
        e.salu("s_lshl_b32", sT2, sW, 11)
        e.salu("s_lshl_b32", sKVM, sW, 11)
        return

    def att_prefetch01(self):
        for t in range(2):
            for kind in "KV":
                for th in self.kv_issue(kind, t): th()

    def att_main(self):
        e = self.e
        e.wait_tokens(self.kvtok[("K", 0)] + self.kvtok[("K", 1)] + self.kvtok[("V", 0)] + self.kvtok[("V", 1)])
        e.wait_all(vm=False, lg=True)
        e.barrier()
        for th in self.kv_issue("K", 2) + self.kv_issue("V", 2) + self.kv_issue("K", 3): th()
        for th in self.k_reads(0): th()
        for th in self.qk_mfmas(0, czero=True): th()
        kr = self.k_reads(1)
        for th in kr: th()
        dl = [vE[10], vE[11]]
        q1 = self.qk_mfmas(1, czero=True)
        for th in q1: th()
        self.rowmax(0, dl)
        for u in range(2):
            for r in range(16):
                e.valu("v_sub_f32", NEG(u)[r], 0, dl[u])
        for u in range(2):
            for r in range(16):
                e.valu("v_sub_f32", Sb(0, u)[r], Sb(0, u)[r], dl[u])
        for u in range(2):
            for r in range(16):
                e.valu("v_sub_f32", Sb(1, u)[r], Sb(1, u)[r], dl[u])
        for th in self.v_reads(0): th()
        for th in self.sm_ops(0): th()
        self.sm_check(0)
        otiles = list(range(78, 81))
        for i in range(16):
            e.comment("---- attention iteration %d" % i)
            need = self.kvtok.get(("K", i + 2), []) + self.kvtok.get(("V", i + 1), [])
            e.wait_tokens(need)
            e.barrier()
            mf = self.pv_mfmas(i) + (self.qk_mfmas(i + 2) if i + 2 < 16 else [])
            gaps = [[] for _ in mf]
            ng = len(mf)
            dm = []
            if i + 4 < 16: dm += self.kv_issue("K", i + 4)
            if i + 3 < 16: dm += self.kv_issue("V", i + 3)
            if 8 <= i < 11: dm += self.tile_issue(otiles[i - 8])
            for k, th in enumerate(dm): gaps[min(ng - 1, 1 + (k * (ng - 2)) // max(1, len(dm)))].append(th)
            if i + 2 < 16:
                for k, th in enumerate(self.k_reads(i + 2)): gaps[2 * k].append(th)
            if i + 1 < 16:
                vr = self.v_reads(i + 1)
                if i + 2 < 16:
                    for k, th in enumerate(vr): gaps[16 + k].append(th)
                else:
                    self.tail_vr = vr
                sm = self.sm_ops(i + 1)
                lo = 2
                for k, th in enumerate(sm): gaps[min(ng - 1, lo + (k * (ng - lo)) // len(sm))].append(th)
            for k, m in enumerate(mf):
                m()
                for th in gaps[k]: th()
            if i + 1 < 16 and i + 2 >= 16:
                for th in self.tail_vr: th()
            if i + 1 < 16: self.sm_check(i + 1)

    def att_epilogue(self):
        e = self.e
        e.perm("v_permlane32_swap_b32", vL[0], vL[1])
        e.valu("v_add_f32", vL[0], vL[0], vL[1])
        e.valu("v_mov_b32", vL[1], vL[0])
        e.perm("v_permlane32_swap_b32", vL[0], vL[1])
        for u in range(2): e.valu("v_rcp_f32", vL[u], vL[u])
        ow = vE[0]
        e.salu("s_and_b32", sT0, sW, 1)
        e.salu("s_lshl_b32", sT0, sT0, 14)
        e.salu("s_lshr_b32", sT1, sW, 1)
        e.salu("s_lshl_b32", sT1, sT1, 16)
        e.salu("s_add_u32", sT0, sT0, sT1)
        e.valu("v_add_u32", ow, sT0, vL16)
        n = 0
        for ks in range(8):
            for u in range(2):
                o = Oacc(ks >> 1, u).sub(8 * (ks & 1), 8)
                y = [V(128 + (n & 1) * 8 + k) for k in range(8)]
                d = V(144 + (n & 1) * 4, 4)
                for k in range(8): e.accread(y[k], o[k])
                for k in range(8): e.valu("v_mul_f32", y[k], y[k], vL[u])
                for k in range(4): e.valu("v_cvt_pk_bf16_f32", d[k], y[2 * k], y[2 * k + 1])
                e.ds_write("ds_write_b128", ow, d, (2 * ks + u) * 1024)
                n += 1
        e.wait_all(vm=False, lg=True)
        e.barrier()

    def main_kernel(self):
        e = self.e
        e.label("main_kernel")
        self.prologue()
        self.stamp("ln_done")
        st = e.state(); tiles0 = {k: list(v) for k, v in self.tiles.items()}
        e.raw("s_cmp_ge_u32 %s, 2" % sW.t)
        e.raw("s_cbranch_scc1 L_f1b")
        self.gemm("F1", 0, 32, 4, acc)
        self.f1_epilogue(4)
        e.wait_all(vm=False, lg=True)
        vm_a = len(e.vm)
        e.raw("s_branch L_f1_join")
        st_a = e.state(); tiles_a = self.tiles
        e.restore(st); self.tiles = tiles0
        e.label("L_f1b")
        nid_save = e.nid
        self.gemm("F1", 0, 32, 3, acc)
        self.f1_epilogue(3)
        e.wait_all(vm=False, lg=True)
        assert len(e.vm) == vm_a, (len(e.vm), vm_a)
        e.label("L_f1_join")
        e.lastw, e.lastC, e.lastStore = {}, {}, {}
        e.nop(2)
        e.barrier()
        self.stamp("f1_done")
        self.gemm("F2", 32, 14, 4, acc)
        self.stamp("f2_gemm")
        self.partial_store(sPD)
        self.attention()
        self.stamp("f2_done")
        e.wait_all(vm=False, lg=True)
        e.barrier()
        self.att_prefetch01()
        self.gemm("Q", 46, 32, 4, acc, issue_limit=78)
        self.stamp("q_gemm")
        self.q_epilogue()
        self.stamp("q_done")
        self.att_main()
        self.stamp("att_main")
        self.att_epilogue()
        self.stamp("att_done")
        self.gemm("O", 78, 32, 4, acc)
        self.stamp("o_gemm")
        self.partial_store(sPS)
        e.wait_all(vm=True, lg=True)
        self.stamp("end")
        if self.diag: self.write_stamps()
        e.label("L_end")
        e.raw("s_endpgm")
        self.slow_path(0)
        self.slow_path(1)

    def write_stamps(self):
        e = self.e
        e.salu("s_mov_b32", S(4), S(58)); e.salu("s_mov_b32", S(5), S(59))
        e.salu("s_add_u32", S(4), S(4), WS_DBG); e.salu("s_addc_u32", S(5), S(5), 0)
        e.salu("s_mov_b32", S(6), 1 << 20); e.salu("s_mov_b32", S(7), 0x20000)
        e.salu("s_lshl_b32", sT0, S(2), 2); e.salu("s_add_u32", sT0, sT0, sW); e.salu("s_lshl_b32", sT0, sT0, 7)
        e.valu("v_mov_b32", T(1), sT0)
        for i in range(self.nstamp):
            e.valu("v_mov_b32", T(0), S(62 + 2 * i))
            e.buf_store(T(0), T(1), S(4, 4), 0, 4 * i)
        e.wait_all()

    def final_kernel(self, dbgcopy=None):
        e = self.e = E()
        e.label("final_kernel")
        e.raw("s_cmp_ge_u32 s2, 256")
        e.raw("s_cbranch_scc1 L_fend")
        e.raw("s_load_dwordx2 s[64:65], s[0:1], 0")
        e.raw("s_load_dwordx2 s[66:67], s[0:1], 72")
        e.raw("s_load_dwordx2 s[68:69], s[0:1], 88")
        g, rb, w = S(44), S(45), S(46)
        e.salu("s_and_b32", g, S(2), 7)
        e.salu("s_lshr_b32", rb, S(2), 3)
        l = V(1)
        e.valu("v_and_b32", l, 63, V(0))
        e.valu("v_lshrrev_b32", V(2), 6, V(0))
        e.rdlane(w, V(2))
        e.raw("s_waitcnt lgkmcnt(0)")
        sXo, sOut, sP = S(4, 4), S(8, 4), S(12, 4)
        self.srd(sXo, S(64, 2), 0, 2097152)
        self.srd(sOut, S(66, 2), 0, 2097152)
        e.salu("s_lshl_b32", S(47), rb, 19)
        self.srd(sP, S(68, 2), 0, 32 << 20, S(47))
        e.salu("s_lshr_b32", S(48), g, 1); e.salu("s_lshl_b32", S(48), S(48), 14)
        e.salu("s_and_b32", S(49), g, 1); e.salu("s_lshl_b32", S(49), S(49), 1)
        e.salu("s_and_b32", S(50), w, 1); e.salu("s_add_u32", S(49), S(49), S(50))
        e.salu("s_lshr_b32", S(51), w, 1)
        e.salu("s_lshl_b32", S(52), S(49), 1); e.salu("s_add_u32", S(52), S(52), S(51))
        e.salu("s_lshl_b32", S(52), S(52), 11); e.salu("s_add_u32", S(48), S(48), S(52))
        vo = V(3)
        e.valu("v_lshlrev_b32", vo, 4, l)
        e.valu("v_add_u32", vo, S(48), vo)
        for reg, base in ((0, WS_D), (1, WS_S)):
            for gp in range(8):
                e.salu("s_mov_b32", S(53), base + gp * 65536)
                for q in range(2):
                    e.buf_load(V(64 + ((reg * 8 + gp) * 2 + q) * 4, 4), vo, sP, S(53), q * 1024)
        xo = V(4)
        e.valu("v_and_b32", V(5), 31, l)
        e.salu("s_lshl_b32", S(54), rb, 6); e.salu("s_lshl_b32", S(55), S(51), 5); e.salu("s_add_u32", S(54), S(54), S(55))
        e.valu("v_add_u32", V(5), S(54), V(5))
        e.valu("v_lshlrev_b32", V(5), 10, V(5))
        e.valu("v_lshrrev_b32", V(6), 5, l)
        e.valu("v_lshl_add_u32", V(5), V(6), 4, V(5))
        e.salu("s_lshr_b32", S(54), g, 1); e.salu("s_lshl_b32", S(54), S(54), 8)
        e.salu("s_lshl_b32", S(55), S(49), 6); e.salu("s_add_u32", S(54), S(54), S(55))
        e.valu("v_add_u32", xo, S(54), V(5))
        X = [V(8, 4), V(12, 4)]
        for q in range(2): e.buf_load(X[q], xo, sXo, 0, q * 32)
        e.salu("s_mov_b32", S(56), -math.log2(math.e))
        for q in range(2):
            sums = []
            for reg in range(2):
                accv = [V(16 + reg * 8 + k) for k in range(8)]
                for gp in range(8):
                    src = V(64 + ((reg * 8 + gp) * 2 + q) * 4, 4)
                    for k in range(4):
                        lo, hi = V(32 + 2 * k), V(33 + 2 * k)
                        if gp == 0:
                            e.valu("v_lshlrev_b32", accv[2 * k], 16, src[k])
                            e.valu("v_and_b32", accv[2 * k + 1], 0xffff0000, src[k])
                        else:
                            e.valu("v_lshlrev_b32", lo, 16, src[k])
                            e.valu("v_and_b32", hi, 0xffff0000, src[k])
                            e.valu("v_add_f32", accv[2 * k], accv[2 * k], lo)
                            e.valu("v_add_f32", accv[2 * k + 1], accv[2 * k + 1], hi)
                sums.append(accv)
            d, s = sums
            t = [V(40 + k) for k in range(8)]
            for k in range(8):
                e.valu("v_mul_f32", t[k], S(56), d[k])
                e.valu("v_exp_f32", t[k], t[k])
                e.valu("v_add_f32", t[k], 1.0, t[k])
                e.valu("v_rcp_f32", t[k], t[k])
                e.valu("v_mul_f32", t[k], t[k], d[k])
                e.valu("v_mul_f32", t[k], t[k], s[k])
            for k in range(4): e.perm("v_permlane32_swap_b32", t[k], t[4 + k])
            xr = X[q]
            o = V(48, 4)
            for k in range(4):
                lo, hi = V(32 + 2 * k), V(33 + 2 * k)
                e.valu("v_lshlrev_b32", lo, 16, xr[k])
                e.valu("v_and_b32", hi, 0xffff0000, xr[k])
                e.valu("v_add_f32", lo, lo, t[2 * k])
                e.valu("v_add_f32", hi, hi, t[2 * k + 1])
                e.valu("v_cvt_pk_bf16_f32", o[k], lo, hi)
            e.buf_store(o, xo, sOut, 0, q * 32)
            e.nop(2)
        e.wait_all()
        if dbgcopy is not None:
            e.raw("s_cmp_eq_u32 s2, 0")
            e.raw("s_cbranch_scc0 L_fend")
            e.raw("s_load_dwordx2 s[70:71], s[0:1], 80")
            e.raw("s_waitcnt lgkmcnt(0)")
            self.srd(S(16, 4), S(70, 2), 0, 64)
            self.srd(S(20, 4), S(68, 2), 40 << 20, 1 << 20)
            e.valu("v_and_b32", V(2), 63, V(0))
            e.valu("v_add_u32", V(3), 19, V(2))
            e.cmp("v_cmp_gt_u32", "vcc", 10, V(2))
            e.cnd(V(3), V(3), V(2))
            e.valu("v_lshlrev_b32", V(3), 2, V(3))
            e.valu("v_add_u32", V(3), dbgcopy * 4 * 128, V(3))
            e.buf_load(V(4), V(3), S(20, 4), 0, 0)
            e.valu("v_lshlrev_b32", V(2), 2, V(2))
            e.buf_store(V(4), V(2), S(16, 4), 0, 0)
            e.wait_all()
        e.label("L_fend")
        e.raw("s_endpgm")
        return e.text()

def kd(name, vgpr, acc, sgpr=102):
    return """.amdhsa_kernel %s
  .amdhsa_next_free_vgpr %d
  .amdhsa_next_free_sgpr %d
  .amdhsa_accum_offset %d
  .amdhsa_group_segment_fixed_size 0
  .amdhsa_kernarg_size 96
  .amdhsa_user_sgpr_count 2
  .amdhsa_user_sgpr_kernarg_segment_ptr 1
  .amdhsa_system_sgpr_workgroup_id_x 1
  .amdhsa_float_denorm_mode_32 3
.end_amdhsa_kernel
""" % (name, vgpr, sgpr, acc)

HEADER = """; Fused LayerNorm + ReGLU FFN + sliding-window GQA attention + gated residual (gfx950).
; main_kernel : one workgroup per (64-row block, KV group); writes bf16 partial sums to d_ws
; @launch kernel=main_kernel grid=(256,1,1) block=(256,1,1) lds=163840
; @launch kernel=final_kernel grid=(256,1,1) block=(256,1,1) lds=0
.amdgcn_target "amdgcn-amd-amdhsa--gfx950"
.text
"""

def build(diag=False):
    g = Gen(diag=diag)
    g.main_kernel()
    main = g.e.text()
    stats = dict(g.e.stats)
    names = getattr(g, "stamp_names", [])
    fin = g.final_kernel()
    s = HEADER
    s += ".globl main_kernel\n.p2align 8\n.type main_kernel,@function\n".replace("main_kernel", "main_kernel")
    s += main
    s += ".globl final_kernel\n.p2align 8\n.type final_kernel,@function\n" + fin
    s += '.section .rodata,"a"\n.p2align 6\n' + kd("main_kernel", 512, 256) + ".p2align 6\n" + kd("final_kernel", 192, 192)
    return s, stats, names

if __name__ == "__main__":
    diag = "--diag" in sys.argv
    out = [a for a in sys.argv[1:] if not a.startswith("--")]
    s, stats, names = build(diag)
    path = out[0] if out else "cdna_kernels/%s.s" % NAME
    open(path, "w").write(s)
    print(path, len(s), "bytes", stats, names)
```

```python
import sys, struct, math
from collections import deque
from emit import E, V, A, S, R

NAME = "recurrent_scan__sliding_block_cached__glu_gated_reglu__prompt"

LDS_XN   = 0
LDS_H    = 65536
LDS_DUMMY = LDS_H + 28 * 1024
LDS_RING = 98304
LDS_KV   = 32768
def kvslot(t): return (t % 4) * 16384
WS_D, WS_S, WS_F, WS_DBG = 0, 16 << 20, 32 << 20, 40 << 20
CSCALE   = (128 ** -0.5) * math.log2(math.e)
THR      = float(2 ** 24)

sX, sK, sV, sWQ, sWO, sWG, sWU, sWD, sPD, sPS = [S(4 * i + 4, 4) for i in range(10)]
sG, sRB, sW, sRING, sRUN, sT0, sTHR, sT1, sT2, sOFF2 = [S(44 + i) for i in range(10)]
sONES, sKVM, sKO, sVO, sBI, sB2 = S(54), S(55), S(56), S(57), S(58), S(59)
sRET  = S(60, 2)
sR14, sCS = S(62), S(63)
sFO, sSHORT, sROT = S(98), S(99), S(100)
sWSP = S(96, 2)
sOUT, sDBG, sFL = S(64, 4), S(68, 4), S(72, 4)
sNON, sSPIN, sGC = S(76), S(77), S(78)
STAMP0 = 80

vTID, vLANE, vL16, vL16H = V(0), V(1), V(2), V(3)
vTC = [V(4 + i) for i in range(4)]
vTV = [V(8 + i) for i in range(4)]
vK  = [V(12 + i) for i in range(8)]
vDW = [V(20 + i) for i in range(4)]
vDK = [V(24), V(25)]
vDV = V(26)
vST = V(27)
vTN = [V(28 + i) for i in range(4)]
vTF = [V(32 + i) for i in range(4)]
vDG = [V(36), V(37)]
vDU = [V(38), V(39)]
vDQ = [V(40 + i) for i in range(4)]
vHW, vHW3, vB = V(44), V(45), V(0)
vLX = V(63)
vFO, vFL = V(58), V(60)
vNO = V(61)
vCO, vXO = V(59), V(13)
vXR = [V(8, 4), V(14, 4)]
vGA = [V(28 + i) for i in range(16)]
TMP = 46
def T(i, n=1): return V(TMP + i, n)
QF  = 64
def Qf(u, ks): return V(QF + (u * 8 + ks) * 4, 4)
def accV(mb, nb): return V(128 + (mb * 2 + nb) * 16, 16)
def accA(mb, nb): return A((mb * 2 + nb) * 16, 16)
def Sb(p, u): return V(128 + (p * 2 + u) * 16, 16)
def NEG(u): return V(192 + u * 16, 16)
def Pf(p, u, kk): return V(224 + ((p * 2 + u) * 2 + kk) * 4, 4)
Oacc = accA
FR = [128]
def Af(buf, mb): return A(FR[0] + buf * 16 + mb * 4, 4)
def Bf(buf, nb): return A(FR[0] + 32 + buf * 8 + nb * 4, 4)
def Dpk(idx): return A(128 + 4 * idx, 4)
def Kf(ks): return A(192 + 4 * ks, 4)
def Vf(kk, mb): return A(224 + (kk * 4 + mb) * 4, 4)
def Kf1(ks): return A(4 * ks, 4)
vL = [V(28), V(29)]
vTS = [V(30), V(31)]
vE = [V(32 + i) for i in range(12)]
vDL = [V(44), V(45)]

COST = {"exp": 8}

class Task:
    __slots__ = ("f", "c", "k")
    def __init__(self, f, c=4, k="v"): self.f, self.c, self.k = f, c, k
    def __call__(self): self.f()
def TS(f, c=4): return Task(f, c, "s")
def TM(f, c=4): return Task(f, c, "m")
def run_gap(tasks):
    for t in tasks:
        if t.k != "v": t()
    for t in tasks:
        if t.k == "v": t()

class Gen:
    def __init__(self, diag=False, opt=None):
        self.e = E()
        self.diag = diag
        self.o = dict(bg=True, depth=4, rot=True, dstore="sc1", sstore="sc1", rotmul=1, xmap=1)
        if opt: self.o.update(opt)
        self.nstamp = 0
        self.tiles = {}
        self.bg = deque()
        self.stamp_names = []
        self.pst = []
    def stamp(self, name, force=False):
        if not self.diag: return
        if name.startswith("att_it"): return
        e = self.e
        e.comment("stamp " + name)
        e.raw("s_memtime s[94:95]")
        e.wait_all(vm=False, lg=True)
        e.raw("s_mov_b32 s%d, s94" % (STAMP0 + self.nstamp))
        self.nstamp += 1
        assert STAMP0 + self.nstamp <= 92
        self.stamp_names.append(name)
    def pstamp(self, name):
        if not self.o.get("pstamp"): return
        e = self.e
        n = len(self.pst)
        e.raw("s_memtime s[88:89]")
        e.raw("s_waitcnt lgkmcnt(0)")
        e.raw("v_mov_b32 v%d, s88" % (240 + n))
        self.pst.append(name)
    def srd(self, dst, ptr, off_lo, size, off_reg=None):
        e = self.e
        if off_reg is not None:
            e.salu("s_add_u32", dst[0], ptr[0], off_reg)
            e.salu("s_addc_u32", dst[1], ptr[1], 0)
            if off_lo:
                e.salu("s_add_u32", dst[0], dst[0], off_lo)
                e.salu("s_addc_u32", dst[1], dst[1], 0)
        elif off_lo:
            e.salu("s_add_u32", dst[0], ptr[0], off_lo)
            e.salu("s_addc_u32", dst[1], ptr[1], 0)
        else:
            e.salu("s_mov_b32", dst[0], ptr[0])
            e.salu("s_mov_b32", dst[1], ptr[1])
        e.salu("s_mov_b32", dst[2], size)
        e.salu("s_mov_b32", dst[3], 0x20000)
    def run_bg(self, budget):
        while self.bg and budget >= self.bg[0].c:
            t = self.bg.popleft(); budget -= t.c; t()
    def flush_bg(self):
        while self.bg: self.bg.popleft()()

    def prologue(self):
        e = self.e
        e.raw("s_cmp_ge_u32 s2, 256")
        e.raw("s_cbranch_scc1 L_end")
        if self.diag:
            e.raw("s_memrealtime s[92:93]")
            e.raw("s_memtime s[94:95]")
            e.raw("s_waitcnt lgkmcnt(0)")
            e.raw("s_mov_b32 s93, s94")
        e.raw("s_load_dwordx16 s[64:79], s[0:1], 0")
        e.raw("s_load_dwordx8 s[80:87], s[0:1], 64")
        ng = self.o["xmap"]
        if ng == 1:
            e.salu("s_and_b32", sG, S(2), 7)
            e.salu("s_lshr_b32", sRB, S(2), 3)
        else:
            lg = {2: 1, 4: 2, 8: 3}[ng]
            e.salu("s_and_b32", sT0, S(2), 7)
            e.salu("s_lshr_b32", sT1, S(2), 3)
            e.salu("s_and_b32", sG, sT0, 8 // ng - 1)
            e.salu("s_lshl_b32", sG, sG, lg)
            e.salu("s_and_b32", sT2, sT1, ng - 1)
            e.salu("s_add_u32", sG, sG, sT2)
            e.salu("s_lshr_b32", sRB, sT0, 3 - lg)
            e.salu("s_mul_i32", sRB, sRB, 32 // ng)
            e.salu("s_lshr_b32", sT2, sT1, lg)
            e.salu("s_add_u32", sRB, sRB, sT2)
        e.salu("s_and_b32", sROT, sRB, 32 // ng - 1)
        if ng > 1: e.salu("s_lshl_b32", sROT, sROT, {2: 1, 4: 2, 8: 3}[ng])
        e.valu("v_and_b32", vLANE, 63, vTID)
        e.valu("v_lshrrev_b32", T(0), 6, vTID)
        e.rdlane(sW, T(0))
        l = vLANE
        r4, c16, g1, hh, c4 = T(1), T(2), T(3), T(4), T(5)
        e.valu("v_and_b32", c16, 15, l)
        e.valu("v_lshrrev_b32", r4, 4, l)
        e.salu("s_lshl_b32", sT0, sRB, 6)
        e.salu("s_lshl_b32", sT1, sW, 4)
        e.salu("s_add_u32", sT0, sT0, sT1)
        e.valu("v_lshrrev_b32", T(14), 2, l)
        e.valu("v_and_b32", T(15), 3, l)
        e.valu("v_add_u32", T(6), sT0, T(14))
        e.valu("v_lshlrev_b32", T(6), 10, T(6))
        e.valu("v_lshl_add_u32", T(6), T(15), 4, T(6))
        a, b, c = T(7), T(8), T(9)
        r8, c8, big = T(10), T(11), T(12)
        e.valu("v_lshrrev_b32", r8, 3, l)
        e.valu("v_and_b32", c8, 7, l)
        e.valu("v_and_b32", a, 2, r8)
        e.valu("v_xor_b32", a, a, c8)
        e.salu("s_lshl_b32", sFO, sW, 7)
        e.salu("s_and_b32", sT0, sG, 1)
        e.salu("s_lshl_b32", sT2, sT0, 6)
        e.raw("s_cmp_eq_u32 %s, 0" % sW.t)
        e.raw("s_cselect_b32 %s, 0, %s" % (sT2.t, sT2.t))
        e.salu("s_sub_u32", sFO, sFO, sT2)
        e.salu("s_mul_i32", sT2, sT0, 3)
        e.salu("s_add_u32", sT2, sT2, sW)
        e.raw("s_cmp_eq_u32 %s, 3" % sT2.t)
        e.raw("s_cselect_b32 %s, 1, 0" % sSHORT.t)
        e.raw("s_cmp_eq_u32 %s, 6" % sT2.t)
        e.raw("s_cselect_b32 %s, 0, %s" % (sSHORT.t, sSHORT.t))
        e.salu("s_mul_i32", sT1, sG, 448)
        e.salu("s_add_u32", sT1, sT1, sFO)
        e.salu("s_mov_b32", sT2, 3584)
        e.valu("v_mul_lo_u32", b, r8, sT2)
        e.valu("v_add_u32", b, sT1, b)
        e.raw("s_cmp_eq_u32 %s, 1" % sSHORT.t)
        e.raw("s_cselect_b32 %s, 4, 8" % sT2.t)
        e.valu("v_mov_b32", big, 0x40000000)
        for (dst, x) in ((vDG, 0), (vDU, 4)):
            e.valu("v_xor_b32", c, x, a)
            e.cmp("v_cmp_gt_u32", "vcc", sT2, c)
            e.valu("v_lshl_add_u32", c, c, 4, b)
            e.cnd(dst[0], big, c)
            e.valu("v_add_u32", dst[1], 8 * 3584 - 1024, dst[0])
        e.salu("s_lshl_b32", sRING, sW, 14)
        e.salu("s_add_u32", sRING, sRING, LDS_RING)
        e.raw("s_waitcnt lgkmcnt(0)")
        px, pk, pv, pwq, pwo, pwg, pwu = S(64, 2), S(66, 2), S(68, 2), S(70, 2), S(72, 2), S(76, 2), S(78, 2)
        pwd, pout, pdbg, pws = S(80, 2), S(82, 2), S(84, 2), S(86, 2)
        self.pstamp("karg")
        self.srd(sX, px, 0, 2097152)
        for i in range(16):
            e.buf_load(V(128 + 4 * i, 4), T(6), sX, 0, 64 * i, "nt" if self.o.get("xnt") else "")
        if self.o.get("cwarm"):
            nch = self.o["cwarm"]
            e.raw("s_getpc_b64 s[88:89]")
            e.label("L_pc")
            e.salu("s_lshr_b32", sT0, S(2), 3)
            e.salu("s_lshl_b32", sT0, sT0, 2)
            e.salu("s_add_u32", sT0, sT0, sW)
            e.salu("s_mul_i32", sT1, sT0, (65536 + nch - 1) // nch)
            e.salu("s_lshr_b32", sT1, sT1, 16)
            e.salu("s_mul_i32", sT1, sT1, nch)
            e.salu("s_sub_u32", sT0, sT0, sT1)
            e.salu("s_lshl_b32", sT0, sT0, 13)
            e.valu("v_lshlrev_b32", T(14), 7, l)
            e.valu("v_add_u32", T(14), sT0, T(14))
            e.valu("v_min_u32", T(14), "L_end-L_pc", T(14))
            e.valu("v_mov_b32", T(15), S(89))
            e.ins("v_add_co_u32", "valu", [T(14), "vcc"], [S(88), T(14)])
            e.nop(2)
            e.ins("v_addc_co_u32", "valu", [T(15), "vcc"], [0, T(15), "vcc"])
            i_ = e._newid()
            e.raw("global_load_dword v61, v[60:61], off")
            e.vm.append(i_); e.pend["v61"] = ("vm", i_)
        self.pstamp("xload")
        self.srd(sWG, pwg, 0, 1835008)
        self.srd(sWU, pwu, 0, 1835008)
        if not self.o.get("wdelay"):
            for t in range(self.o["depth"]):
                for th in self.tile_issue(t): th()
        self.pstamp("dma0")
        e.salu("s_lshl_b32", sT1, sG, 19)
        self.srd(sK, pk, 1536 * 256, 131072, sT1)
        self.srd(sV, pv, 1536 * 256, 131072, sT1)
        self.srd(sWQ, pwq, 0, 4194304)
        self.srd(sWO, pwo, 0, 524288, sT1)
        e.salu("s_mul_i32", sT1, sG, 224 * 1024)
        self.srd(sWD, pwd, 0, 224 * 1024, sT1)
        e.salu("s_lshl_b32", sT1, sRB, 19)
        self.srd(sPD, pws, WS_D, 1 << 19, sT1)
        self.srd(sPS, pws, WS_S, 1 << 19, sT1)
        if self.diag:
            e.salu("s_mov_b32", sWSP[0], pws[0]); e.salu("s_mov_b32", sWSP[1], pws[1])
        self.srd(sOUT, pout, 0, 2097152)
        e.salu("s_lshl_b32", sT1, sRB, 2)
        self.srd(sDBG, pdbg, 0, 4, sT1)
        e.salu("s_lshl_b32", sT1, sRB, 8)
        self.srd(sFL, pws, WS_F, 256, sT1)
        e.raw("s_cmp_eq_u32 %s, 0" % sG.t)
        e.raw("s_cselect_b32 %s, %s, 1" % (sT1.t, sW.t))
        e.raw("s_cmp_eq_u32 %s, 0" % sT1.t)
        e.raw("s_cbranch_scc0 L_no_nonce")
        e.raw("s_memrealtime s[90:91]")
        e.raw("s_waitcnt lgkmcnt(0)")
        e.salu("s_or_b32", S(90), S(90), 1)
        e.valu("v_mov_b32", T(14), S(90))
        e.valu("v_mov_b32", T(15), 0)
        e.raw("buffer_store_dword %s, %s, %s, 0 offen sc1" % (T(14).t, T(15).t, sDBG.t))
        e.label("L_no_nonce")
        e.salu("s_mov_b32", sONES, 0x3f803f80)
        e.salu("s_mov_b32", sTHR, THR)
        e.salu("s_mov_b32", sCS, CSCALE)
        if self.o["rot"]:
            e.salu("s_mov_b32", sR14, sROT)
            for lim in (28, 14):
                e.salu("s_sub_u32", sT1, sR14, lim)
                e.raw("s_cmp_ge_u32 %s, %d" % (sR14.t, lim))
                e.raw("s_cselect_b32 %s, %s, %s" % (sR14.t, sT1.t, sR14.t))
        else:
            e.salu("s_mov_b32", sR14, 0)
        e.valu("v_lshlrev_b32", vL16, 4, l)
        e.valu("v_add_u32", vL16H, LDS_H, vL16)
        e.valu("v_lshlrev_b32", a, 2, r4)
        e.valu("v_xor_b32", a, a, c16)
        e.valu("v_lshlrev_b32", a, 4, a)
        e.valu("v_lshl_add_u32", vDV, r4, 8, a)
        e.salu("s_lshl_b32", sT1, sW, 8)
        e.valu("v_lshl_add_u32", b, r4, 10, a)
        e.valu("v_add_u32", vDW[0], sT1, b)
        for p in range(1, 4):
            e.valu("v_add_u32", vDW[p], p * 3072, vDW[0])
        e.salu("s_lshl_b32", sT2, sG, 10)
        e.salu("s_add_u32", sT1, sT1, sT2)
        e.valu("v_lshl_add_u32", b, r4, 13, a)
        e.valu("v_add_u32", vDQ[0], sT1, b)
        for p in range(1, 4):
            e.valu("v_add_u32", vDQ[p], p * (32768 - 1024), vDQ[0])
        e.salu("s_lshl_b32", sT1, sW, 3)
        for p in range(2):
            e.valu("v_add_u32", b, sT1, r4)
            if p: e.valu("v_add_u32", b, 4, b)
            e.valu("v_and_b32", b, 15, b)
            e.valu("v_xor_b32", b, b, c16)
            e.valu("v_lshlrev_b32", b, 4, b)
            e.valu("v_lshl_add_u32", vDK[p], r4, 8, b)
        rr = T(13)
        e.valu("v_and_b32", g1, 1, r4)
        e.valu("v_lshrrev_b32", hh, 5, l)
        e.valu("v_bfe_u32", rr, l, 2, 2)
        e.valu("v_and_b32", c4, 3, l)
        e.valu("v_lshl_add_u32", a, hh, 2, rr)
        e.valu("v_lshlrev_b32", a, 8, a)
        e.valu("v_lshl_add_u32", a, g1, 5, a)
        e.valu("v_lshl_add_u32", b, c4, 3, a)
        for mb in range(4):
            e.valu("v_xor_b32", c, mb, rr)
            e.valu("v_lshl_add_u32", c, c, 6, b)
            e.valu("v_add_u32", vTC[mb], sRING, c)
            e.valu("v_add_u32", vTV[mb], LDS_KV, c)
        e.valu("v_lshl_add_u32", a, hh, 3, rr)
        e.valu("v_lshlrev_b32", a, 8, a)
        e.valu("v_lshl_add_u32", a, g1, 5, a)
        e.valu("v_lshrrev_b32", b, 1, c4)
        e.valu("v_and_b32", c, 1, c4)
        e.valu("v_lshl_or_b32", b, c, 1, b)
        e.valu("v_lshl_add_u32", b, b, 3, a)
        for mb in range(4):
            e.valu("v_xor_b32", c, mb, rr)
            e.valu("v_lshl_add_u32", c, c, 6, b)
            e.valu("v_add_u32", vTN[mb], sRING, c)
        e.valu("v_lshl_add_u32", a, hh, 3, rr)
        e.valu("v_lshlrev_b32", a, 7, a)
        e.valu("v_lshl_add_u32", a, g1, 11, a)
        e.valu("v_lshl_add_u32", a, c4, 3, a)
        e.valu("v_lshrrev_b32", b, 1, rr)
        e.valu("v_lshl_or_b32", b, g1, 1, b)
        for mb in range(4):
            e.valu("v_xor_b32", c, mb, b)
            e.valu("v_lshl_add_u32", c, c, 5, a)
            e.valu("v_add_u32", vTF[mb], sRING, c)
        e.valu("v_and_b32", a, 31, l)
        e.valu("v_and_b32", b, 15, l)
        e.valu("v_xor_b32", b, b, hh)
        e.valu("v_lshlrev_b32", b, 4, b)
        e.valu("v_lshlrev_b32", a, 8, a)
        e.valu("v_add_u32", a, LDS_KV, a)
        for ks in range(8):
            e.valu("v_xor_b32", c, ks * 32, b)
            e.valu("v_add_u32", vK[ks], a, c)
        e.salu("s_lshl_b32", sT1, sW, 14)
        e.salu("s_lshl_b32", sT2, sG, 11)
        e.salu("s_add_u32", sT1, sT1, sT2)
        e.valu("v_add_u32", vST, sT1, vL16)
        e.salu("s_lshl_b32", sT1, sFO, 6)
        e.valu("v_add_u32", vHW, sT1, vL16H)
        e.salu("s_add_u32", sT1, sT1, 2 * 2048)
        e.raw("s_cmp_eq_u32 %s, 1" % sSHORT.t)
        e.raw("s_cselect_b32 %s, %d, %s" % (sT1.t, 28 * 1024, sT1.t))
        e.valu("v_add_u32", vHW3, sT1, vL16H)
        xw = T(16)
        e.salu("s_lshr_b32", sT1, sW, 1)
        e.salu("s_lshl_b32", sT1, sT1, 10)
        e.salu("s_and_b32", sT2, sW, 1)
        e.salu("s_lshl_b32", sT2, sT2, 4)
        e.valu("v_lshrrev_b32", a, 2, l)
        e.valu("v_add_u32", a, sT2, a)
        e.valu("v_and_b32", b, 3, l)
        e.valu("v_lshrrev_b32", c, 1, b)
        e.valu("v_and_b32", b, 1, b)
        e.valu("v_lshlrev_b32", xw, 11, c)
        e.valu("v_lshl_add_u32", xw, b, 9, xw)
        e.valu("v_lshlrev_b32", c, 2, c)
        e.valu("v_lshl_or_b32", c, b, 1, c)
        e.valu("v_xor_b32", a, a, c)
        e.valu("v_lshl_add_u32", xw, a, 4, xw)
        e.valu("v_add_u32", xw, sT1, xw)
        e.valu("v_and_b32", a, 31, l)
        e.valu("v_lshlrev_b32", b, 1, hh)
        e.valu("v_xor_b32", a, a, b)
        e.valu("v_lshlrev_b32", a, 4, a)
        e.valu("v_lshl_add_u32", vLX, hh, 9, a)
        self.xw = xw
        pass
        if self.o.get("pstamp"):
            e.salu("s_lshl_b32", sT0, S(2), 2); e.salu("s_add_u32", sT0, sT0, sW); e.salu("s_lshl_b32", sT0, sT0, 7)
            e.valu("v_mov_b32", T(1), sT0)
            e.salu("s_add_u32", S(88), sWSP[0], WS_DBG); e.salu("s_addc_u32", S(89), sWSP[1], 0)
            e.salu("s_mov_b32", S(90), 1 << 20); e.salu("s_mov_b32", S(91), 0x20000)
            for i in range(len(self.pst)):
                e.buf_store(V(240 + i), T(1), S(88, 4), 0, 4 * (24 + i))
        self.layernorm()

    def layernorm(self):
        e = self.e
        x = lambda i: V(128 + 4 * i, 4)
        s1a, s1b, s2a, s2b = T(0), T(1), T(2), T(3)
        for r in (s1a, s1b, s2a, s2b): e.valu("v_mov_b32", r, 0)
        wd = self.o.get("wdelay")
        for i in range(16):
            if wd and i == wd:
                for t in range(self.o["depth"]):
                    for th in self.tile_issue(t): th()
            for k in range(4):
                xr = x(i)[k]
                e.valu("v_dot2_f32_bf16", s1a if k & 1 else s1b, xr, sONES, s1a if k & 1 else s1b)
                e.valu("v_dot2_f32_bf16", s2a if k & 1 else s2b, xr, xr, s2a if k & 1 else s2b)
        e.nop(3)
        e.valu("v_add_f32", s1a, s1a, s1b)
        e.valu("v_add_f32", s2a, s2a, s2b)
        for ctrl in ("quad_perm:[1,0,3,2] row_mask:0xf bank_mask:0xf", "quad_perm:[2,3,0,1] row_mask:0xf bank_mask:0xf"):
            e.dpp("v_add_f32_dpp", s1b, s1a, s1a, ctrl)
            e.dpp("v_add_f32_dpp", s2b, s2a, s2a, ctrl)
            s1a, s1b, s2a, s2b = s1b, s1a, s2b, s2a
        mean = T(4)
        rstd, shift = T(6, 2), T(8, 2)
        e.valu("v_mul_f32", mean, 1.0 / 512, s1a)
        e.valu("v_mul_f32", s2a, 1.0 / 512, s2a)
        e.valu("v_fma_f32", s2a, "-" + mean.t, mean, s2a)
        e.valu("v_max_f32", s2a, 0, s2a)
        e.valu("v_add_f32", s2a, 1e-5, s2a)
        e.valu("v_rsq_f32", rstd[0], s2a)
        e.valu("v_mul_f32", shift[0], mean, rstd[0])
        e.valu("v_sub_f32", shift[0], 0, shift[0])
        for i in range(16):
            xi = x(i)
            y = V(192 + 8 * (i & 1), 8)
            for k in range(4):
                e.valu("v_lshlrev_b32", y[2 * k], 16, xi[k])
                e.valu("v_and_b32", y[2 * k + 1], 0xffff0000, xi[k])
            for k in range(4):
                e.valu("v_pk_fma_f32", y.sub(2 * k, 2), y.sub(2 * k, 2), rstd, shift, suffix=" op_sel_hi:[1,0,0]")
            for k in range(4):
                e.valu("v_cvt_pk_bf16_f32", xi[k], y[2 * k], y[2 * k + 1])
            e.ds_write("ds_write_b128", self.xw, xi, i * 4096)
        e.wait_all(vm=False, lg=True)
        e.barrier()

    PH = [("F1", 32), ("Q", 32), ("F2", 14), ("O", 32)]
    def tile_info(self, T_):
        t = T_
        for ph, n in self.PH:
            if t < n: return ph, t, n
            t -= n
        return None
    def phase_T0(self, ph):
        t = 0
        for p, n in self.PH:
            if p == ph: return t
            t += n
    def tile_issue(self, T_):
        info = self.tile_info(T_)
        if info is None: return []
        e = self.e
        ph, s, n = info
        slot = T_ % 4
        toks = self.tiles.setdefault(T_, [])
        stride = {"F1": 16 * 3584, "Q": 16 * 8192, "F2": 16 * 1024, "O": 16 * 1024}[ph]
        th = []
        def m0(off): return TS(lambda: e.salu("s_add_u32", "m0", sRING, off))
        def d(vo, srd, off): return TM(lambda: toks.append(e.dma(vo, srd, sRUN, off)), 8)
        if s == 0:
            rot = sR14 if ph == "F2" else sROT
            if self.o["rot"]:
                sh = self.o["rotmul"]
                th.append(TS(lambda: e.salu("s_mul_i32", sRUN, rot, stride)))
            else: th.append(TS(lambda: e.salu("s_mov_b32", sRUN, 0)))
        if ph == "F1":
            th += [m0(slot * 4096), d(vDG[0], sWG, 0), d(vDG[1], sWG, 1024),
                   m0(slot * 4096 + 2048), d(vDU[0], sWU, 0), d(vDU[1], sWU, 1024)]
        else:
            srd, va = {"F2": (sWD, vDW), "Q": (sWQ, vDQ), "O": (sWO, vDW)}[ph]
            th += [m0(slot * 4096)] + [d(va[p], srd, p * 1024) for p in range(4)]
        if s + 1 < n:
            th.append(TS(lambda: e.salu("s_add_u32", sRUN, sRUN, stride)))
            tot = n * stride
            if tot & (tot - 1) == 0:
                th.append(TS(lambda: e.salu("s_and_b32", sRUN, sRUN, tot - 1)))
            else:
                def wrap():
                    e.raw("s_cmp_eq_u32 %s, 0x%x" % (sRUN.t, tot))
                    e.raw("s_cselect_b32 %s, 0, %s" % (sRUN.t, sRUN.t))
                th.append(TS(wrap, 8))
        return th

    def gemm(self, ph, nmb, accf, pre_steps=None, bgbudget=8, issue_limit=None, extra=None, gapx=None):
        e = self.e
        T0 = self.phase_T0(ph)
        n = dict(self.PH)[ph]
        depth = self.o["depth"]
        def a_reads(T_, buf):
            slot = T_ % 4
            th = []
            for mb in range(nmb):
                for j in range(2):
                    if ph == "F1": addr, off = vTF[mb], slot * 4096 + j * 512
                    elif ph == "Q": addr, off = vTN[mb], slot * 4096 + j * 1024
                    else: addr, off = vTC[mb], slot * 4096 + j * 2048
                    dst = Af(buf, mb).sub(2 * j, 2)
                    th.append(TM(lambda addr=addr, off=off, dst=dst: e.ds_read("ds_read_b64_tr_b16", dst, addr, off)))
            return th
        base = vL16H if ph == "F2" else vL16
        swz = ph in ("F1", "Q")
        def b_addr(s):
            th = []
            if s == 0:
                rot = sR14 if ph == "F2" else sROT
                if self.o["rot"]: th.append(TS(lambda: e.salu("s_lshl_b32", sBI, rot, 11)))
                else: th.append(TS(lambda: e.salu("s_mov_b32", sBI, 0)))
                if swz:
                    def ini():
                        e.salu("s_lshr_b32", sB2, sBI, 5)
                        e.salu("s_and_b32", sB2, sB2, 64)
                        e.salu("s_or_b32", sBI, sBI, sB2)
                    th.append(TS(ini, 12))
            else:
                th.append(TS(lambda: e.salu("s_add_u32", sBI, sBI, 2048)))
                if n == 32: th.append(TS(lambda: e.salu("s_and_b32", sBI, sBI, 0xffff)))
                else:
                    def wrap():
                        e.raw("s_cmp_eq_u32 %s, 0x%x" % (sBI.t, n * 2048))
                        e.raw("s_cselect_b32 %s, 0, %s" % (sBI.t, sBI.t))
                    th.append(TS(wrap, 8))
                if swz: th.append(TS(lambda: e.salu("s_xor_b32", sBI, sBI, 64)))
            if swz: th.append(Task(lambda: e.valu("v_xor_b32", vB, sBI, vLX)))
            else: th.append(Task(lambda: e.valu("v_add_u32", vB, sBI, base)))
            return th
        def b_reads(buf):
            return [TM(lambda nb=nb: e.ds_read("ds_read_b128", Bf(buf, nb), vB, nb * 1024)) for nb in range(2)]
        for th in b_addr(0): th()
        e.wait_tokens(self.tiles[T0])
        ar = a_reads(T0, 0); br = b_reads(0)
        for th in [ar[0], ar[1], br[0], br[1]] + ar[2:]: th()
        nm = nmb * 2
        for s in range(n):
            T_ = T0 + s
            buf = s & 1
            gaps = [[] for _ in range(nm)]
            if s + 1 < n:
                ar = a_reads(T_ + 1, buf ^ 1); br = b_reads(buf ^ 1)
                gaps[0] += b_addr(s + 1)
                gaps[0].insert(0, TS(lambda T1=T_ + 1: e.wait_tokens(self.tiles[T1])))
                if nm == 8:
                    plan = [[ar[0], ar[1]], [br[0], br[1]], [ar[2], ar[3]], [ar[4], ar[5]], [ar[6], ar[7]], [], [], []]
                elif nm == 4:
                    plan = [[ar[0], ar[1]], [br[0], br[1]], [ar[2], ar[3]], []]
                else: raise ValueError
                for k in range(nm): gaps[k] += plan[k]
            nxt = T_ + depth
            dm = self.tile_issue(nxt) if (issue_limit is None or nxt < issue_limit) else []
            if extra: dm = dm + extra(s)
            if dm:
                first = 1
                span = nm - first
                tot = sum(t.c for t in dm); accd = 0
                for t in dm:
                    k = first + min(span - 1, int(accd * span / tot))
                    if nm == 8: k = min(nm - 1, max(k, 1))
                    gaps[k].append(t); accd += t.c
            if gapx:
                for kk_, tl in gapx(s).items():
                    if kk_ == 0: gaps[0] = tl + gaps[0]
                    else: gaps[kk_] += tl
            regs = []
            for mb in range(nmb): regs += Af(buf, mb).regs
            for nb in range(2): regs += Bf(buf, nb).regs
            e._need(regs)
            k = 0
            for mb in range(nmb):
                for nb in range(2):
                    c = 0 if s == 0 else accf(mb, nb)
                    e.mfma(accf(mb, nb), Af(buf, mb), Bf(buf, nb), c)
                    used = sum(t.c for t in gaps[k])
                    bgt = []
                    room = min(bgbudget, 24 - used - (4 if k == nm - 1 else 0))
                    has_v = any(t.k == "v" for t in gaps[k])
                    while self.bg and room >= self.bg[0].c:
                        if self.bg[0].k != "v" and (bgt or has_v): break
                        t = self.bg.popleft(); room -= t.c; bgt.append(t)
                    for t in gaps[k]:
                        if t.k != "v": t()
                    for t in bgt:
                        if t.k != "v": t()
                    for t in gaps[k]:
                        if t.k == "v": t()
                    for t in bgt:
                        if t.k == "v": t()
                    k += 1

    def f1_epilogue_tasks(self):
        e = self.e
        th = []
        for mb in range(4):
            for nb in range(2):
                a = accV(mb, nb)
                for k in range(8): th.append(Task(lambda a=a, k=k: e.valu("v_max_f32", a[k], 0, a[k])))
                for k in range(8): th.append(Task(lambda a=a, k=k: e.valu("v_mul_f32", a[k], a[k], a[8 + k])))
                d = T(0, 4) if (mb * 2 + nb) & 1 else T(4, 4)
                for k in range(4): th.append(Task(lambda a=a, k=k, d=d: e.valu("v_cvt_pk_bf16_f32", d[k], a[2 * k], a[2 * k + 1])))
                if mb < 2: th.append(Task(lambda d=d, mb=mb, nb=nb: e.ds_write("ds_write_b128", vHW, d, (2 * mb + nb) * 1024), 16, "w"))
                else: th.append(Task(lambda d=d, mb=mb, nb=nb: e.ds_write("ds_write_b128", vHW3, d, (2 * (mb - 2) + nb) * 1024), 16, "w"))
        return th
    def q_epilogue_tasks(self):
        e = self.e
        th = []
        n = 0
        for ks in range(8):
            for u in range(2):
                a = accA(ks >> 1, u)
                o = 8 * (ks & 1)
                y = [T(8 * (n & 1) + k) for k in range(8)]
                n += 1
                for k in range(8): th.append(Task(lambda a=a, k=k, y=y, o=o: e.accread(y[k], a[o + k])))
                for k in range(8): th.append(Task(lambda k=k, y=y: e.valu("v_mul_f32", y[k], sCS, y[k])))
                d = Qf(u, ks)
                for k in range(4): th.append(Task(lambda k=k, y=y, d=d: e.valu("v_cvt_pk_bf16_f32", d[k], y[2 * k], y[2 * k + 1])))
        return th
    def d_pack_tasks(self, mb):
        e = self.e
        th = []
        for nb in range(2):
            a = accV(mb, nb)
            for q in range(2):
                idx = (mb * 2 + nb) * 2 + q
                for k in range(4):
                    t = V(32 + 4 * (idx & 1) + k)
                    th.append(Task(lambda a=a, q=q, k=k, t=t: e.valu("v_cvt_pk_bf16_f32", t, a[8 * q + 2 * k], a[8 * q + 2 * k + 1])))
                for k in range(4):
                    t = V(32 + 4 * (idx & 1) + k)
                    th.append(Task(lambda idx=idx, k=k, t=t: e.accwrite(Dpk(idx)[k], t)))
        return th
    def d_store_tasks(self, idx):
        e = self.e
        th = []
        if idx % 2 == 0: th.append(TS(lambda: e.salu("s_mov_b32", sOFF2, (idx >> 1) * 65536)))
        th.append(TM(lambda: self.dtok.append(e.buf_store(Dpk(idx), vST, sPD, sOFF2, (idx & 1) * 1024, "sc1")), 8))
        return th
    def s_store(self):
        e = self.e
        n = 0
        toks = []
        for mb in range(4):
            for nb in range(2):
                a = accV(mb, nb)
                e.salu("s_mov_b32", sOFF2, (mb * 2 + nb) * 65536)
                for q in range(2):
                    d = T(4 * (n % 3), 4)
                    for k in range(4):
                        e.valu("v_cvt_pk_bf16_f32", d[k], a[8 * q + 2 * k], a[8 * q + 2 * k + 1])
                    toks.append(e.buf_store(d, vST, sPS, sOFF2, q * 1024, "sc1"))
                    n += 1
        return toks

    def nonce_issue(self):
        e = self.e
        return [Task(lambda: e.valu("v_mov_b32", vNO, 0)),
                TM(lambda: e.buf_load(vNO, vNO, sDBG, 0, 0, "sc1"), 8)]
    def nonce_get(self):
        e = self.e
        e.rdlane(sNON, vNO)
        e.raw("s_cmp_lg_u32 %s, 0" % sNON.t)
        e.raw("s_cbranch_scc1 L_nonce_ok")
        e.raw("s_call_b64 %s, L_spin_nonce" % sRET.t)
        e.label("L_nonce_ok")
    def flag_store(self, typ):
        e = self.e
        lab = "L_noflag_%d" % typ
        e.raw("s_cmp_eq_u32 %s, 0" % sW.t)
        e.raw("s_cbranch_scc0 %s" % lab)
        e.raw("s_lshl_b32 %s, %s, 2" % (sT0.t, sG.t))
        e.raw("s_add_u32 %s, %s, %d" % (sT0.t, sT0.t, typ * 128))
        e.raw("v_mov_b32 %s, %s" % (T(16).t, sT0.t))
        e.raw("v_mov_b32 %s, %s" % (vFL.t, sNON.t))
        e.raw("buffer_store_dword %s, %s, %s, 0 offen sc1" % (vFL.t, T(16).t, sFL.t))
        e.label(lab)
        e.nop(2)
    def flag_poll_issue(self, typ):
        e = self.e
        return TM(lambda: e.buf_load(vFL, vFO, sFL, 0, typ * 128, "sc1"), 8)
    def flag_check(self, typ):
        e = self.e
        lab = "L_flag_ok_%d" % typ
        e.cmp("v_cmp_ne_u32", "vcc", sNON, vFL)
        e.ins("s_cbranch_vccz", "salu", [], [lab], extra_uses=["vcc"])
        e.raw("s_call_b64 %s, L_spin_flag_%d" % (sRET.t, typ))
        e.label(lab)
    def spin_routines(self):
        e = self.e
        st = e.state()
        def reset():
            e.lastw, e.lastC, e.lastStore, e.pend = {}, {}, {}, {}
            e.lg, e.vm = [], []
        LIM = 1 << 18
        e.label("L_spin_nonce"); reset()
        e.raw("s_mov_b32 %s, 0" % sSPIN.t)
        e.label("L_spin_nonce_loop")
        e.raw("s_sleep 2")
        e.raw("v_mov_b32 %s, 0" % vNO.t)
        e.raw("s_nop 1")
        e.raw("buffer_load_dword %s, %s, %s, 0 offen sc1" % (vNO.t, vNO.t, sDBG.t))
        e.raw("s_waitcnt vmcnt(0)")
        e.raw("v_readfirstlane_b32 %s, %s" % (sNON.t, vNO.t))
        e.raw("s_add_u32 %s, %s, 1" % (sSPIN.t, sSPIN.t))
        e.raw("s_cmp_ge_u32 %s, %d" % (sSPIN.t, LIM))
        e.raw("s_cbranch_scc1 L_spin_nonce_out")
        e.raw("s_cmp_eq_u32 %s, 0" % sNON.t)
        e.raw("s_cbranch_scc1 L_spin_nonce_loop")
        e.label("L_spin_nonce_out")
        e.raw("s_nop 4")
        e.raw("s_setpc_b64 %s" % sRET.t)
        for typ in range(2):
            e.label("L_spin_flag_%d" % typ); reset()
            e.raw("s_mov_b32 %s, 0" % sSPIN.t)
            e.label("L_spin_flag_loop_%d" % typ)
            e.raw("s_sleep %d" % (16 if typ == 0 else 4))
            e.raw("buffer_load_dword %s, %s, %s, 0 offen offset:%d sc1" % (vFL.t, vFO.t, sFL.t, typ * 128))
            e.raw("s_waitcnt vmcnt(0)")
            e.raw("v_cmp_ne_u32 vcc, %s, %s" % (sNON.t, vFL.t))
            e.raw("s_add_u32 %s, %s, 1" % (sSPIN.t, sSPIN.t))
            e.raw("s_cmp_ge_u32 %s, %d" % (sSPIN.t, LIM))
            e.raw("s_cbranch_scc1 L_spin_flag_out_%d" % typ)
            e.raw("s_nop 2")
            e.raw("s_cbranch_vccnz L_spin_flag_loop_%d" % typ)
            e.label("L_spin_flag_out_%d" % typ)
            e.raw("s_nop 4")
            e.raw("s_setpc_b64 %s" % sRET.t)
        e.restore(st)

    def part_loads(self, srd, dstf):
        e = self.e
        th = []
        for j in range(16):
            if j % 4 == 0: th.append(TS(lambda j=j: e.salu("s_add_u32", sOFF2, sGC, (j // 4) * 4096)))
            th.append(TM(lambda j=j: e.buf_load(dstf(j), vCO, srd, sOFF2, (j % 4) * 1024, "sc1"), 8))
        return th
    def part_sum(self, srcf, accv, tmp, stage=None):
        e = self.e
        th = []
        for gp in range(8):
            for q in range(2):
                src = srcf(gp * 2 + q)
                if stage is not None:
                    st = stage[(gp * 2 + q) & 1]
                    for k in range(4): th.append(Task(lambda k=k, st=st, src=src: e.accread(st[k], src[k])))
                    src = st
                for k in range(4):
                    lo, hi = accv[8 * q + 2 * k], accv[8 * q + 2 * k + 1]
                    if gp == 0:
                        th.append(Task(lambda lo=lo, r=src[k]: e.valu("v_lshlrev_b32", lo, 16, r)))
                        th.append(Task(lambda hi=hi, r=src[k]: e.valu("v_and_b32", hi, 0xffff0000, r)))
                    else:
                        ta, tb = tmp[2 * (k & 1)], tmp[2 * (k & 1) + 1]
                        th.append(Task(lambda ta=ta, r=src[k]: e.valu("v_lshlrev_b32", ta, 16, r)))
                        th.append(Task(lambda tb=tb, r=src[k]: e.valu("v_and_b32", tb, 0xffff0000, r)))
                        th.append(Task(lambda lo=lo, ta=ta: e.valu("v_add_f32", lo, lo, ta)))
                        th.append(Task(lambda hi=hi, tb=tb: e.valu("v_add_f32", hi, hi, tb)))
        return th
    def silu_tasks(self, d, tmp):
        e = self.e
        th = []
        for k in range(16):
            t = tmp[k & 3]
            th.append(Task(lambda k=k, t=t: e.valu("v_mul_f32", t, sT2, d[k])))
            th.append(Task(lambda t=t: e.valu("v_exp_f32", t, t), 8))
            th.append(Task(lambda: None, 0))
        out = []
        for g0 in range(0, 16, 4):
            ks = range(g0, g0 + 4)
            for k in ks: out.append(Task(lambda k=k: e.valu("v_mul_f32", tmp[k & 3], sT2, d[k])))
            for k in ks: out.append(Task(lambda k=k: e.valu("v_exp_f32", tmp[k & 3], tmp[k & 3]), 8))
            for k in ks: out.append(Task(lambda k=k: e.valu("v_add_f32", tmp[k & 3], 1.0, tmp[k & 3])))
            for k in ks: out.append(Task(lambda k=k: e.valu("v_rcp_f32", tmp[k & 3], tmp[k & 3]), 8))
            for k in ks: out.append(Task(lambda k=k: e.valu("v_mul_f32", d[k], d[k], tmp[k & 3])))
        return out
    def consumer_setup(self):
        e = self.e
        l = vLANE
        e.valu("v_and_b32", vFO, 7, l)
        e.valu("v_lshlrev_b32", vFO, 2, vFO)
        e.salu("s_lshl_b32", sGC, sG, 16)
        e.salu("s_lshl_b32", sT0, sW, 14)
        e.valu("v_add_u32", vCO, sT0, vL16)
    def final_setup(self):
        e = self.e
        l = vLANE
        e.salu("s_lshl_b32", sT0, sRB, 6)
        e.salu("s_and_b32", sT1, sG, 1); e.salu("s_lshl_b32", sT1, sT1, 5)
        e.salu("s_add_u32", sT0, sT0, sT1)
        e.valu("v_and_b32", vXO, 31, l)
        e.valu("v_add_u32", vXO, sT0, vXO)
        e.valu("v_lshlrev_b32", vXO, 10, vXO)
        e.valu("v_lshrrev_b32", T(16), 5, l)
        e.valu("v_lshl_add_u32", vXO, T(16), 4, vXO)
        e.salu("s_lshl_b32", sT0, sW, 8)
        e.salu("s_lshr_b32", sT1, sG, 1); e.salu("s_lshl_b32", sT1, sT1, 6)
        e.salu("s_add_u32", sT0, sT0, sT1)
        e.valu("v_add_u32", vXO, sT0, vXO)
        e.salu("s_mov_b32", sT2, -math.log2(math.e))
        e.buf_load(vXR[0], vXO, sX, 0, 0)
        e.buf_load(vXR[1], vXO, sX, 0, 32)
    def o_phase_hooks(self):
        e = self.e
        def gapx(s):
            g = {}
            if s == 1:
                self.bg.extend(self.part_sum(Dpk, vGA, [T(0), T(1), T(2), T(3)], stage=[T(4, 4), T(8, 4)]))
                self.bg.extend(self.silu_tasks(vGA, [T(0), T(1), T(2), T(3)]))
            return g
        return gapx
    def final_combine(self, stoks):
        e = self.e
        e.wait_tokens(stoks)
        self.stamp("s_acked")
        e.barrier()
        self.flag_store(1)
        e.raw("s_cmp_eq_u32 %s, 0" % sW.t)
        e.raw("s_cbranch_scc0 L_s_polled")
        e.raw("s_call_b64 %s, L_spin_flag_1" % sRET.t)
        e.label("L_s_polled")
        e.barrier()
        self.stamp("s_flags")
        sf = lambda j: V(64 + 4 * j, 4)
        for t in self.part_loads(sPS, sf): t()
        if self.diag:
            e.wait_all(vm=True, lg=False)
            self.stamp("s_loaded")
        sacc = [V(128 + k) for k in range(16)]
        for t in self.part_sum(sf, sacc, [T(0), T(1), T(2), T(3)]): t()
        for k in range(16): e.valu("v_mul_f32", sacc[k], sacc[k], vGA[k])
        for q in range(2):
            t = sacc[8 * q:8 * q + 8]
            for k in range(4): e.perm("v_permlane32_swap_b32", t[k], t[4 + k])
            xr = vXR[q]
            o = V(148 + 4 * q, 4)
            for k in range(4):
                lo, hi = T(2 * (k & 1)), T(2 * (k & 1) + 1)
                e.valu("v_lshlrev_b32", lo, 16, xr[k])
                e.valu("v_and_b32", hi, 0xffff0000, xr[k])
                e.valu("v_add_f32", lo, lo, t[2 * k])
                e.valu("v_add_f32", hi, hi, t[2 * k + 1])
                e.valu("v_cvt_pk_bf16_f32", o[k], lo, hi)
            e.buf_store(o, vXO, sOUT, 0, q * 32)

    def kv_issue(self, kind, t):
        e = self.e
        toks = self.kvtok.setdefault((kind, t), [])
        base = LDS_KV + kvslot(t) + (8192 if kind == "V" else 0)
        so = sKO if kind == "K" else sVO
        th = [TS(lambda: e.salu("s_add_u32", "m0", sKVM, base))]
        for p in range(2):
            vo = vDK[p] if kind == "K" else vDV
            srd = sK if kind == "K" else sV
            th.append(TM(lambda vo=vo, srd=srd, p=p: toks.append(e.dma(vo, srd, so, p * 1024)), 8))
        th.append(TS(lambda: e.salu("s_add_u32", so, so, 8192)))
        th.append(TS(lambda: e.salu("s_and_b32", so, so, 0x1ffff)))
        return th
    def kv_setup(self):
        e = self.e
        self.kvtok = {}
        self.dtok = []
        self.dloads = self.part_loads(sPD, Dpk)
        e.salu("s_lshl_b32", sKVM, sW, 11)
        if self.o["rot"]:
            e.salu("s_lshr_b32", sKO, sROT, 1)
            e.salu("s_lshl_b32", sKO, sKO, 13)
            e.salu("s_add_u32", sKO, sKO, sKVM)
        else:
            e.salu("s_mov_b32", sKO, sKVM)
        e.salu("s_mov_b32", sVO, sKO)
    def k_reads(self, t, kf=Kf):
        e = self.e
        return [TM(lambda ks=ks: e.ds_read("ds_read_b128", kf(ks), vK[ks], kvslot(t))) for ks in range(8)]
    def v_reads(self, t):
        e = self.e
        th = []
        for kk in range(2):
            for mb in range(4):
                for j in range(2):
                    th.append(TM(lambda kk=kk, mb=mb, j=j: e.ds_read("ds_read_b64_tr_b16", Vf(kk, mb).sub(2 * j, 2), vTV[mb],
                                                                       kvslot(t) + 8192 + kk * 4096 + j * 2048)))
        return th
    def qk_mfmas(self, t, czero=False, kf=Kf):
        e = self.e
        p = t & 1
        th = []
        for ks in range(8):
            for u in range(2):
                c = (0 if czero else NEG(u)) if ks == 0 else Sb(p, u)
                th.append(lambda ks=ks, u=u, c=c: e.mfma(Sb(p, u), kf(ks), Qf(u, ks), c))
        return th
    def pv_mfmas(self, t):
        e = self.e
        p = t & 1
        th = []
        for kk in range(2):
            for mb in range(4):
                for u in range(2):
                    c = 0 if (t == 0 and kk == 0) else Oacc(mb, u)
                    th.append(lambda kk=kk, mb=mb, u=u, c=c: e.mfma(Oacc(mb, u), Vf(kk, mb), Pf(p, u, kk), c))
        return th
    def sm_ops(self, t, sub=None, split=False):
        e = self.e
        p = t & 1
        pairs = []
        for kk in range(2):
            for u in range(2):
                for k2 in range(4): pairs.append((kk, u, k2))
        th = []
        def exps(n):
            kk, u, k2 = pairs[n]
            s = Sb(p, u); r0 = 8 * kk + 2 * k2
            ea, eb = vE[(2 * n) % 12], vE[(2 * n + 1) % 12]
            o = []
            if sub is not None:
                o.append(Task(lambda: e.valu("v_sub_f32", s[r0], s[r0], sub[u])))
                o.append(Task(lambda: e.valu("v_sub_f32", s[r0 + 1], s[r0 + 1], sub[u])))
            o.append(Task(lambda: e.valu("v_exp_f32", ea, s[r0]), 8))
            o.append(Task(lambda: e.valu("v_exp_f32", eb, s[r0 + 1]), 8))
            return o
        def post(n):
            kk, u, k2 = pairs[n]
            ea, eb = vE[(2 * n) % 12], vE[(2 * n + 1) % 12]
            o = []
            if kk == 0 and k2 == 0:
                o.append(Task(lambda: e.valu("v_add_f32", vTS[u], ea, eb)))
            else:
                o.append(Task(lambda: e.valu("v_add_f32", vTS[u], vTS[u], ea)))
                o.append(Task(lambda: e.valu("v_add_f32", vTS[u], vTS[u], eb)))
            o.append(Task(lambda: e.valu("v_cvt_pk_bf16_f32", Pf(p, u, kk)[k2], ea, eb)))
            return o
        if split:
            h0 = exps(0)
            for n in range(1, 8): h0 += exps(n) + post(n - 1)
            h0 += post(7)
            h1 = exps(8)
            for n in range(9, 16): h1 += exps(n) + post(n - 1)
            h1 += post(15)
            return h0, h1
        th += exps(0)
        for n in range(1, 16):
            th += exps(n); th += post(n - 1)
        th += post(15)
        return th
    def sm_check(self, t, mid=None):
        e = self.e
        p = t & 1
        e.valu("v_max_f32", vE[0], vTS[0], vTS[1])
        e.cmp("v_cmp_nge_f32", "vcc", sTHR, vE[0])
        if mid: mid()
        lab = "L_ok_%d" % t
        e.ins("s_cbranch_vccz", "salu", [], [lab], extra_uses=["vcc"])
        e.raw("s_call_b64 %s, L_slow_%d" % (sRET.t, p))
        e.label(lab)
    def rowmax(self, p, dst):
        e = self.e
        for u in range(2):
            s = Sb(p, u)
            e.valu("v_max3_f32", dst[u], s[0], s[1], s[2])
            for k in range(3, 15, 2):
                e.valu("v_max3_f32", dst[u], dst[u], s[k], s[k + 1])
            e.valu("v_max_f32", dst[u], dst[u], s[15])
        e.perm("v_permlane32_swap_b32", dst[0], dst[1])
        e.valu("v_max_f32", dst[0], dst[0], dst[1])
        e.valu("v_mov_b32", dst[1], dst[0])
        e.perm("v_permlane32_swap_b32", dst[0], dst[1])
    def slow_path(self, p):
        e = self.e
        st = e.state()
        e.label("L_slow_%d" % p)
        e.lastw, e.lastC, e.lastStore, e.pend = {}, {}, {}, {}
        e.lg, e.vm = [], []
        e.raw("s_waitcnt lgkmcnt(0)")
        e.nop(24)
        dl = [vE[0], vE[1]]; al = [vE[2], vE[3]]; tm = vE[4]
        self.rowmax(p, dl)
        for u in range(2):
            e.valu("v_max_f32", dl[u], 0, dl[u])
            e.valu("v_exp_f32", al[u], "-" + dl[u].t)
            for r in range(16):
                e.valu("v_sub_f32", NEG(u)[r], NEG(u)[r], dl[u])
                e.valu("v_sub_f32", Sb(p, u)[r], Sb(p, u)[r], dl[u])
                e.valu("v_sub_f32", Sb(p ^ 1, u)[r], Sb(p ^ 1, u)[r], dl[u])
            e.valu("v_mul_f32", vL[u], vL[u], al[u])
            for mb in range(4):
                for r in range(16):
                    e.accread(tm, Oacc(mb, u)[r])
                    e.valu("v_mul_f32", tm, tm, al[u])
                    e.accwrite(Oacc(mb, u)[r], tm)
        for th in self.sm_ops(p): th()
        e.nop(8)
        e.raw("s_setpc_b64 %s" % sRET.t)
        e.restore(st)

    def pack(self, mf, fixed, flow, lo=0, cap=24, hi=None):
        ng = len(mf)
        if hi is None: hi = ng - 1
        flow = deque((t if isinstance(t, tuple) else (t, ng + 1)) for t in flow)
        used = [sum(t.c for t in fixed[k]) for k in range(ng)]
        total = sum(t.c for t, _ in flow)
        room = sum(max(0, cap - used[k]) for k in range(lo, hi + 1))
        ratio = total / room if room else 1.0
        target = 0.0; done = 0
        for k in range(ng):
            while flow and flow[0][1] <= k:
                t, _ = flow.popleft(); done += t.c; t()
            mf[k]()
            pre = [t for t in fixed[k] if t.k != "v"]
            post = [t for t in fixed[k] if t.k == "v"]
            got = []
            if lo <= k <= hi:
                r = max(0, cap - used[k])
                target = max(target, done) if ratio > 1 else target
                target += r * min(ratio, 1.0) if ratio <= 1 else r
                while flow and (k == hi or (done + flow[0][0].c <= target + 2 and flow[0][0].c <= r)):
                    if flow[0][0].k != "v" and (got or post): break
                    t, _ = flow.popleft(); done += t.c; r -= t.c; got.append(t)
            for t in pre: t()
            for t in [x for x in got if x.k != "v"]: t()
            for t in post: t()
            for t in [x for x in got if x.k == "v"]: t()
        while flow: flow.popleft()[0]()

    def f2_extra(self):
        e = self.e
        tok = self.kvtok
        kvpre = self.kv_issue("K", 0) + self.kv_issue("V", 0) + self.kv_issue("K", 1) + self.kv_issue("V", 1)
        def extra(s):
            if s < 4: return kvpre[5 * s:5 * s + 5]
            return []
        def gapx(s):
            g = {}
            if s == 10:
                g[0] = [TS(lambda: (e.wait_tokens(tok[("K", 0)] + tok[("K", 1)] + tok[("V", 0)] + tok[("V", 1)]), e.barrier()), 8)]
            if s == 12:
                kr = self.k_reads(0)
                for j in range(8): g.setdefault(5 + j // 3, []).append(kr[j])
            if s == 13:
                g[0] = [TS(lambda: e.barrier())]
                kr = self.k_reads(1, Kf1); vr = self.v_reads(0)
                rd = kr + vr
                for j, t in enumerate(rd): g.setdefault((j * 8) // len(rd), []).append(t)
                dp = self.d_pack_tasks(0)
                for j, t in enumerate(dp): g.setdefault(4 + (j * 4) // len(dp), []).append(t)
            return g
        return extra, gapx

    def iter_fixed(self, i, base, fixed, ng, pend_l, T0):
        e = self.e
        tok = self.kvtok
        need = tok.get(("K", i + 2), []) + tok.get(("V", i + 1), [])
        fixed[base].append(TS(lambda need=need: (e.wait_tokens(need), e.barrier()), 8))
        fixed[base] += pend_l
        dm = []
        if i + 4 < 16: dm += self.kv_issue("K", i + 4)
        if i + 3 < 16: dm += self.kv_issue("V", i + 3)
        if i < 8: dm += self.d_store_tasks(2 * i) + self.d_store_tasks(2 * i + 1)
        if i == 5: dm += self.nonce_issue()[1:]
        if i == 11: dm += [self.flag_poll_issue(0)]
        if 12 <= i < 16: dm += self.dloads[5 * (i - 12):5 * (i - 11)]
        if 8 <= i < 8 + self.o["depth"]: dm += self.tile_issue(T0 + i - 8)
        full = (ng - base) == 32
        vr = None
        if i + 2 < 16:
            for k, th in enumerate(self.k_reads(i + 2)): fixed[base + 1 + k].append(th)
            kregs = []
            for ks in range(8): kregs += Kf(ks).regs
            fixed[base + 15].append(TS(lambda kregs=kregs: e._need(kregs)))
        if i + 1 < 16:
            vr = self.v_reads(i + 1)
            if full:
                for k, th in enumerate(vr): fixed[base + 16 + (k * 12) // 16].append(th)
                vr = None
        order = [9, 10, 11, 12, 13, 14, 15, 19, 22, 25, 28, 29, 30] if full else list(range(1, 15))
        groups = []; cur = []
        for t in dm:
            cur.append(t)
            if t.k == "m": groups.append(cur); cur = []
        if cur:
            if groups: groups[-1] += cur
            else: groups.append(cur)
        for j, gtasks in enumerate(groups):
            fixed[base + order[min(len(order) - 1, j)]] += gtasks
        return vr

    def att_main(self):
        e = self.e
        tok = self.kvtok
        self.stamp("att_it_start")
        self.flush_bg()
        self.consumer_setup()
        dl = vDL
        T0 = self.phase_T0("O")
        vregs = []
        for kk in range(2):
            for mb in range(4): vregs += Vf(kk, mb).regs
        mf = self.qk_mfmas(0, czero=True)
        fixed = [[] for _ in mf]
        dm = self.kv_issue("K", 2) + self.kv_issue("V", 2) + self.kv_issue("K", 3)
        for j, t in enumerate(dm): fixed[1 + (j * 14) // len(dm)].append(t)
        self.pack(mf, fixed, self.d_pack_tasks(1) + self.d_pack_tasks(2) + self.d_pack_tasks(3))
        self.stamp("att_it_qk0")
        mf = self.qk_mfmas(1, czero=True, kf=Kf1) + self.pv_mfmas(0) + self.qk_mfmas(2)
        ng = len(mf)
        fixed = [[] for _ in mf]
        fixed[2].append(Task(lambda: self.rowmax(0, dl), 104))
        h0, h1 = self.sm_ops(0, sub=dl, split=True)
        flow = [(t, 16) for t in h0] + [(t, 24) for t in h1]
        flow += [(Task(lambda u=u: e.valu("v_mov_b32", vL[u], vTS[u])), 30) for u in range(2)]
        for u in range(2):
            for r in range(16): flow.append((Task(lambda u=u, r=r: e.valu("v_sub_f32", NEG(u)[r], 0, dl[u])), 32))
        flow += self.sm_ops(1, sub=dl)
        self.iter_fixed(0, 16, fixed, ng, [], T0)
        self.pack(mf, fixed, flow, lo=3, hi=ng - 2)
        self.sm_check(1, mid=lambda: e._need(vregs))
        pend_l = [Task(lambda u=u: e.valu("v_add_f32", vL[u], vL[u], vTS[u])) for u in range(2)]
        for i in range(1, 16):
            e.comment("---- attention iteration %d" % i)
            if i < 13: self.stamp("att_it%d" % i)
            mf = self.pv_mfmas(i) + (self.qk_mfmas(i + 2) if i + 2 < 16 else [])
            ng = len(mf)
            fixed = [[] for _ in mf]
            e._need(vregs)
            if i == 5: e.valu("v_mov_b32", vNO, 0)
            if i == 8: self.nonce_get()
            if i == 9: e.wait_tokens(self.dtok)
            if i == 10: self.flag_store(0)
            if i == 12: self.flag_check(0)
            vr = self.iter_fixed(i, 0, fixed, ng, pend_l, T0)
            flow = self.sm_ops(i + 1) if i + 1 < 16 else []
            self.pack(mf, fixed, flow, lo=self.o.get("smlo", 1), hi=ng - 2, cap=self.o.get("cap", 24))
            if vr:
                for th in vr: th()
            if i + 1 < 16:
                self.sm_check(i + 1, mid=lambda: e._need(vregs))
                pend_l = [Task(lambda u=u: e.valu("v_add_f32", vL[u], vL[u], vTS[u])) for u in range(2)]
            else: pend_l = []

    def att_epilogue(self):
        e = self.e
        e.perm("v_permlane32_swap_b32", vL[0], vL[1])
        e.valu("v_add_f32", vL[0], vL[0], vL[1])
        e.valu("v_mov_b32", vL[1], vL[0])
        e.perm("v_permlane32_swap_b32", vL[0], vL[1])
        for u in range(2): e.valu("v_rcp_f32", vL[u], vL[u])
        ow = vE[0]
        e.salu("s_lshl_b32", sT0, sW, 14)
        e.valu("v_add_u32", ow, sT0, vL16)
        n = 0
        for ks in range(8):
            for u in range(2):
                o = Oacc(ks >> 1, u).sub(8 * (ks & 1), 8)
                y = [V(128 + (n & 1) * 8 + k) for k in range(8)]
                d = V(144 + (n & 1) * 4, 4)
                for k in range(8): e.accread(y[k], o[k])
                for k in range(8): e.valu("v_mul_f32", y[k], y[k], vL[u])
                for k in range(4): e.valu("v_cvt_pk_bf16_f32", d[k], y[2 * k], y[2 * k + 1])
                e.ds_write("ds_write_b128", ow, d, (2 * ks + u) * 1024)
                n += 1
        e.wait_all(vm=False, lg=True)
        e.barrier()

    def main_kernel(self):
        e = self.e
        e.label("main_kernel")
        self.stamp("start") if False else None
        self.prologue()
        self.stamp("ln_done")
        st = e.state(); tiles0 = {k: list(v) for k, v in self.tiles.items()}
        e.raw("s_cmp_eq_u32 %s, 1" % sSHORT.t)
        e.raw("s_cbranch_scc1 L_f1b")
        self.gemm("F1", 4, accV)
        e.wait_all(vm=False, lg=True)
        vm_a = len(e.vm)
        e.raw("s_branch L_f1_join")
        e.restore(st); self.tiles = tiles0
        e.label("L_f1b")
        self.gemm("F1", 2, accV)
        e.wait_all(vm=False, lg=True)
        assert len(e.vm) == vm_a, (len(e.vm), vm_a)
        e.label("L_f1_join")
        e.lastw, e.lastC, e.lastStore = {}, {}, {}
        e.nop(12)
        self.stamp("f1")
        if self.o["bg"]: self.bg.extend(self.f1_epilogue_tasks())
        else:
            for t in self.f1_epilogue_tasks(): t()
        self.gemm("Q", 4, accA)
        self.flush_bg()
        self.kv_setup()
        self.stamp("q")
        e.wait_all(vm=False, lg=True)
        e.barrier()
        if self.o["bg"]: self.bg.extend(self.q_epilogue_tasks())
        else:
            for t in self.q_epilogue_tasks(): t()
        extra, gapx = self.f2_extra()
        self.gemm("F2", 4, accV, issue_limit=self.phase_T0("O"), extra=extra, gapx=gapx, bgbudget=16)
        self.stamp("f2")
        self.flush_bg()
        pass
        self.att_main()
        self.stamp("att_main")
        self.att_epilogue()
        FR[0] = 192
        self.final_setup()
        self.stamp("att_done")
        self.gemm("O", 4, accV, gapx=self.o_phase_hooks(), bgbudget=12)
        self.flush_bg()
        self.stamp("o_gemm")
        stoks = self.s_store()
        self.stamp("s_issue")
        self.final_combine(stoks)
        e.wait_all(vm=True, lg=True)
        self.stamp("end")
        if self.diag: self.write_stamps()
        e.label("L_end")
        e.raw("s_endpgm")
        self.slow_path(0)
        self.slow_path(1)
        self.spin_routines()

    def write_stamps(self):
        e = self.e
        e.raw("s_waitcnt lgkmcnt(0)")
        e.salu("s_add_u32", S(4), sWSP[0], WS_DBG); e.salu("s_addc_u32", S(5), sWSP[1], 0)
        e.salu("s_mov_b32", S(6), 1 << 20); e.salu("s_mov_b32", S(7), 0x20000)
        e.salu("s_lshl_b32", sT0, sRB, 3); e.salu("s_add_u32", sT0, sT0, sG)
        e.salu("s_lshl_b32", sT0, sT0, 2); e.salu("s_add_u32", sT0, sT0, sW); e.salu("s_lshl_b32", sT0, sT0, 7)
        e.valu("v_mov_b32", T(1), sT0)
        for i in range(self.nstamp):
            e.valu("v_mov_b32", T(0), S(STAMP0 + i))
            e.buf_store(T(0), T(1), S(4, 4), 0, 4 * i)
        e.raw("s_memrealtime s[90:91]")
        e.raw("s_waitcnt lgkmcnt(0)")
        for i, r in enumerate((S(92), S(90), S(93))):
            e.valu("v_mov_b32", T(0), r)
            e.buf_store(T(0), T(1), S(4, 4), 0, 4 * (29 + i))
        e.wait_all()

from gen import kd
KNAME = NAME + "_kernel"
HEADER = """; Fused LayerNorm + ReGLU FFN + sliding-window GQA attention + gated residual (gfx950), one launch.
; @launch grid=(256,1,1) block=(256,1,1) lds=163840
.amdgcn_target "amdgcn-amd-amdhsa--gfx950"
.text
"""
def build(diag=False, opt=None):
    g = Gen(diag=diag, opt=opt)
    g.main_kernel()
    main = g.e.text().replace("main_kernel:", KNAME + ":")
    stats = dict(g.e.stats)
    names = g.stamp_names
    s = HEADER
    s += ".globl %s\n.p2align 8\n.type %s,@function\n" % (KNAME, KNAME) + main
    s += '.section .rodata,"a"\n.p2align 6\n' + kd(KNAME, 512, 256)
    return s, stats, names

if __name__ == "__main__":
    diag = "--diag" in sys.argv
    opt = {}
    for a in sys.argv[1:]:
        if a.startswith("--") and "=" in a:
            k, v = a[2:].split("=")
            opt[k] = {"True": True, "False": False}.get(v, int(v) if v.lstrip("-").isdigit() else v)
    out = [a for a in sys.argv[1:] if not a.startswith("--")]
    s, stats, names = build(diag, opt)
    path = out[0] if out else "cdna_kernels/%s.s" % NAME
    open(path, "w").write(s)
    print(path, len(s), "bytes", stats, names)
```

```python
import sys, struct, math
from collections import deque
from emit import E, V, A, S, R

NAME = "recurrent_scan__sliding_block_cached__glu_gated_reglu__prompt"

LDS_XN   = 0
LDS_H    = 65536
LDS_DUMMY = LDS_H + 28 * 1024
LDS_RING = 98304
LDS_KV   = 32768
def kvslot(t): return (t % 4) * 16384
WS_D, WS_S, WS_F, WS_DBG = 0, 16 << 20, 32 << 20, 40 << 20
CSCALE   = (128 ** -0.5) * math.log2(math.e)
THR      = float(2 ** 24)

sX, sK, sV, sWQ, sWO, sWG, sWU, sWD, sPD, sPS = [S(4 * i + 4, 4) for i in range(10)]
sG, sRB, sW, sRING, sRUN, sT0, sTHR, sT1, sT2, sOFF2 = [S(44 + i) for i in range(10)]
sONES, sKVM, sKO, sVO, sBI, sB2 = S(54), S(55), S(56), S(57), S(58), S(59)
sRET  = S(60, 2)
sR14, sCS = S(62), S(63)
sFO, sSHORT, sROT = S(98), S(99), S(100)
sWSP = S(96, 2)
sOUT, sDBG, sFL = S(64, 4), S(68, 4), S(72, 4)
sNON, sSPIN, sGC = S(76), S(77), S(78)
STAMP0 = 80

vTID, vLANE, vL16, vL16H = V(0), V(1), V(2), V(3)
vTC = [V(4 + i) for i in range(4)]
vTV = [V(8 + i) for i in range(4)]
vK  = [V(12 + i) for i in range(8)]
vDW = [V(20 + i) for i in range(4)]
vDK = [V(24), V(25)]
vDV = V(26)
vST = V(27)
vTN = [V(28 + i) for i in range(4)]
vTF = [V(32 + i) for i in range(4)]
vDG = [V(36), V(37)]
vDU = [V(38), V(39)]
vDQ = [V(40 + i) for i in range(4)]
vHW, vHW3, vB = V(44), V(45), V(0)
vLX = V(63)
vFO, vFL = V(58), V(60)
vNO = V(61)
vCO, vXO = V(59), V(13)
vXR = [V(8, 4), V(14, 4)]
vGA = [V(28 + i) for i in range(16)]
TMP = 46
def T(i, n=1): return V(TMP + i, n)
QF  = 64
def Qf(u, ks): return V(QF + (u * 8 + ks) * 4, 4)
def accV(mb, nb): return V(128 + (mb * 2 + nb) * 16, 16)
def accA(mb, nb): return A((mb * 2 + nb) * 16, 16)
def Sb(p, u): return V(128 + (p * 2 + u) * 16, 16)
def NEG(u): return V(192 + u * 16, 16)
def Pf(p, u, kk): return V(224 + ((p * 2 + u) * 2 + kk) * 4, 4)
Oacc = accA
FR = [128]
def Af(buf, mb): return A(FR[0] + buf * 16 + mb * 4, 4)
def Bf(buf, nb): return A(FR[0] + 32 + buf * 8 + nb * 4, 4)
def Dpk(idx): return A(128 + 4 * idx, 4)
def Kf(ks): return A(192 + 4 * ks, 4)
def Vf(kk, mb): return A(224 + (kk * 4 + mb) * 4, 4)
def Kf1(ks): return A(4 * ks, 4)
vL = [V(28), V(29)]
vTS = [V(30), V(31)]
vE = [V(32 + i) for i in range(12)]
vDL = [V(44), V(45)]

COST = {"exp": 8}

class Task:
    __slots__ = ("f", "c", "k")
    def __init__(self, f, c=4, k="v"): self.f, self.c, self.k = f, c, k
    def __call__(self): self.f()
def TS(f, c=4): return Task(f, c, "s")
def TM(f, c=4): return Task(f, c, "m")
def run_gap(tasks):
    for t in tasks:
        if t.k != "v": t()
    for t in tasks:
        if t.k == "v": t()

class Gen:
    def __init__(self, diag=False, opt=None):
        self.e = E()
        self.diag = diag
        self.o = dict(bg=True, depth=4, rot=True, dstore="sc1", sstore="sc1", rotmul=1, xmap=1)
        if opt: self.o.update(opt)
        self.nstamp = 0
        self.tiles = {}
        self.bg = deque()
        self.stamp_names = []
        self.pst = []
    def stamp(self, name, force=False):
        if not self.diag: return
        e = self.e
        if self.o.get("stamps") == "att":
            if not name.startswith("att_it") or self.nstamp >= 5: return
            e.raw("s_memtime s[%d:%d]" % (STAMP0 + 2 * self.nstamp, STAMP0 + 2 * self.nstamp + 1))
            self.nstamp += 1
            self.stamp_names.append(name)
            return
        if name.startswith("att_it"): return
        e.comment("stamp " + name)
        e.raw("s_memtime s[94:95]")
        e.wait_all(vm=False, lg=True)
        e.raw("s_mov_b32 s%d, s94" % (STAMP0 + self.nstamp))
        self.nstamp += 1
        assert STAMP0 + self.nstamp <= 92
        self.stamp_names.append(name)
    def pstamp(self, name):
        if not self.o.get("pstamp"): return
        e = self.e
        n = len(self.pst)
        e.raw("s_memtime s[88:89]")
        e.raw("s_waitcnt lgkmcnt(0)")
        e.raw("v_mov_b32 v%d, s88" % (240 + n))
        self.pst.append(name)
    def srd(self, dst, ptr, off_lo, size, off_reg=None):
        e = self.e
        if off_reg is not None:
            e.salu("s_add_u32", dst[0], ptr[0], off_reg)
            e.salu("s_addc_u32", dst[1], ptr[1], 0)
            if off_lo:
                e.salu("s_add_u32", dst[0], dst[0], off_lo)
                e.salu("s_addc_u32", dst[1], dst[1], 0)
        elif off_lo:
            e.salu("s_add_u32", dst[0], ptr[0], off_lo)
            e.salu("s_addc_u32", dst[1], ptr[1], 0)
        else:
            e.salu("s_mov_b32", dst[0], ptr[0])
            e.salu("s_mov_b32", dst[1], ptr[1])
        e.salu("s_mov_b32", dst[2], size)
        e.salu("s_mov_b32", dst[3], 0x20000)
    def run_bg(self, budget):
        while self.bg and budget >= self.bg[0].c:
            t = self.bg.popleft(); budget -= t.c; t()
    def flush_bg(self):
        while self.bg: self.bg.popleft()()

    def prologue(self):
        e = self.e
        e.raw("s_cmp_ge_u32 s2, 256")
        e.raw("s_cbranch_scc1 L_end")
        if self.diag:
            e.raw("s_memrealtime s[92:93]")
            e.raw("s_memtime s[94:95]")
            e.raw("s_waitcnt lgkmcnt(0)")
            e.raw("s_mov_b32 s93, s94")
        e.raw("s_load_dwordx16 s[64:79], s[0:1], 0")
        e.raw("s_load_dwordx8 s[80:87], s[0:1], 64")
        ng = self.o["xmap"]
        if ng == 1:
            e.salu("s_and_b32", sG, S(2), 7)
            e.salu("s_lshr_b32", sRB, S(2), 3)
        else:
            lg = {2: 1, 4: 2, 8: 3}[ng]
            e.salu("s_and_b32", sT0, S(2), 7)
            e.salu("s_lshr_b32", sT1, S(2), 3)
            e.salu("s_and_b32", sG, sT0, 8 // ng - 1)
            e.salu("s_lshl_b32", sG, sG, lg)
            e.salu("s_and_b32", sT2, sT1, ng - 1)
            e.salu("s_add_u32", sG, sG, sT2)
            e.salu("s_lshr_b32", sRB, sT0, 3 - lg)
            e.salu("s_mul_i32", sRB, sRB, 32 // ng)
            e.salu("s_lshr_b32", sT2, sT1, lg)
            e.salu("s_add_u32", sRB, sRB, sT2)
        e.salu("s_and_b32", sROT, sRB, 32 // ng - 1)
        if ng > 1: e.salu("s_lshl_b32", sROT, sROT, {2: 1, 4: 2, 8: 3}[ng])
        e.valu("v_and_b32", vLANE, 63, vTID)
        e.valu("v_lshrrev_b32", T(0), 6, vTID)
        e.rdlane(sW, T(0))
        l = vLANE
        r4, c16, g1, hh, c4 = T(1), T(2), T(3), T(4), T(5)
        e.valu("v_and_b32", c16, 15, l)
        e.valu("v_lshrrev_b32", r4, 4, l)
        e.salu("s_lshl_b32", sT0, sRB, 6)
        e.salu("s_lshl_b32", sT1, sW, 4)
        e.salu("s_add_u32", sT0, sT0, sT1)
        e.valu("v_lshrrev_b32", T(14), 2, l)
        e.valu("v_and_b32", T(15), 3, l)
        e.valu("v_add_u32", T(6), sT0, T(14))
        e.valu("v_lshlrev_b32", T(6), 10, T(6))
        e.valu("v_lshl_add_u32", T(6), T(15), 4, T(6))
        a, b, c = T(7), T(8), T(9)
        r8, c8, big = T(10), T(11), T(12)
        e.valu("v_lshrrev_b32", r8, 3, l)
        e.valu("v_and_b32", c8, 7, l)
        e.valu("v_and_b32", a, 2, r8)
        e.valu("v_xor_b32", a, a, c8)
        e.salu("s_lshl_b32", sFO, sW, 7)
        e.salu("s_and_b32", sT0, sG, 1)
        e.salu("s_lshl_b32", sT2, sT0, 6)
        e.raw("s_cmp_eq_u32 %s, 0" % sW.t)
        e.raw("s_cselect_b32 %s, 0, %s" % (sT2.t, sT2.t))
        e.salu("s_sub_u32", sFO, sFO, sT2)
        e.salu("s_mul_i32", sT2, sT0, 3)
        e.salu("s_add_u32", sT2, sT2, sW)
        e.raw("s_cmp_eq_u32 %s, 3" % sT2.t)
        e.raw("s_cselect_b32 %s, 1, 0" % sSHORT.t)
        e.raw("s_cmp_eq_u32 %s, 6" % sT2.t)
        e.raw("s_cselect_b32 %s, 0, %s" % (sSHORT.t, sSHORT.t))
        e.salu("s_mul_i32", sT1, sG, 448)
        e.salu("s_add_u32", sT1, sT1, sFO)
        e.salu("s_mov_b32", sT2, 3584)
        e.valu("v_mul_lo_u32", b, r8, sT2)
        e.valu("v_add_u32", b, sT1, b)
        e.raw("s_cmp_eq_u32 %s, 1" % sSHORT.t)
        e.raw("s_cselect_b32 %s, 4, 8" % sT2.t)
        e.valu("v_mov_b32", big, 0x40000000)
        for (dst, x) in ((vDG, 0), (vDU, 4)):
            e.valu("v_xor_b32", c, x, a)
            e.cmp("v_cmp_gt_u32", "vcc", sT2, c)
            e.valu("v_lshl_add_u32", c, c, 4, b)
            e.cnd(dst[0], big, c)
            e.valu("v_add_u32", dst[1], 8 * 3584 - 1024, dst[0])
        e.salu("s_lshl_b32", sRING, sW, 14)
        e.salu("s_add_u32", sRING, sRING, LDS_RING)
        e.raw("s_waitcnt lgkmcnt(0)")
        px, pk, pv, pwq, pwo, pwg, pwu = S(64, 2), S(66, 2), S(68, 2), S(70, 2), S(72, 2), S(76, 2), S(78, 2)
        pwd, pout, pdbg, pws = S(80, 2), S(82, 2), S(84, 2), S(86, 2)
        self.pstamp("karg")
        self.srd(sX, px, 0, 2097152)
        for i in range(16):
            e.buf_load(V(128 + 4 * i, 4), T(6), sX, 0, 64 * i, "nt" if self.o.get("xnt") else "")
        if self.o.get("cwarm"):
            nch = self.o["cwarm"]
            e.raw("s_getpc_b64 s[88:89]")
            e.label("L_pc")
            e.salu("s_lshr_b32", sT0, S(2), 3)
            e.salu("s_lshl_b32", sT0, sT0, 2)
            e.salu("s_add_u32", sT0, sT0, sW)
            e.salu("s_mul_i32", sT1, sT0, (65536 + nch - 1) // nch)
            e.salu("s_lshr_b32", sT1, sT1, 16)
            e.salu("s_mul_i32", sT1, sT1, nch)
            e.salu("s_sub_u32", sT0, sT0, sT1)
            e.salu("s_lshl_b32", sT0, sT0, 13)
            e.valu("v_lshlrev_b32", T(14), 7, l)
            e.valu("v_add_u32", T(14), sT0, T(14))
            e.valu("v_min_u32", T(14), "L_end-L_pc", T(14))
            e.valu("v_mov_b32", T(15), S(89))
            e.ins("v_add_co_u32", "valu", [T(14), "vcc"], [S(88), T(14)])
            e.nop(2)
            e.ins("v_addc_co_u32", "valu", [T(15), "vcc"], [0, T(15), "vcc"])
            i_ = e._newid()
            e.raw("global_load_dword v61, v[60:61], off")
            e.vm.append(i_); e.pend["v61"] = ("vm", i_)
        self.pstamp("xload")
        self.srd(sWG, pwg, 0, 1835008)
        self.srd(sWU, pwu, 0, 1835008)
        if not self.o.get("wdelay"):
            for t in range(self.o["depth"]):
                for th in self.tile_issue(t): th()
        self.pstamp("dma0")
        e.salu("s_lshl_b32", sT1, sG, 19)
        self.srd(sK, pk, 1536 * 256, 131072, sT1)
        self.srd(sV, pv, 1536 * 256, 131072, sT1)
        self.srd(sWQ, pwq, 0, 4194304)
        self.srd(sWO, pwo, 0, 524288, sT1)
        e.salu("s_mul_i32", sT1, sG, 224 * 1024)
        self.srd(sWD, pwd, 0, 224 * 1024, sT1)
        e.salu("s_lshl_b32", sT1, sRB, 19)
        self.srd(sPD, pws, WS_D, 1 << 19, sT1)
        self.srd(sPS, pws, WS_S, 1 << 19, sT1)
        if self.diag:
            e.salu("s_mov_b32", sWSP[0], pws[0]); e.salu("s_mov_b32", sWSP[1], pws[1])
        self.srd(sOUT, pout, 0, 2097152)
        e.salu("s_lshl_b32", sT1, sRB, 2)
        self.srd(sDBG, pdbg, 0, 4, sT1)
        e.salu("s_lshl_b32", sT1, sRB, 8)
        self.srd(sFL, pws, WS_F, 256, sT1)
        e.raw("s_cmp_eq_u32 %s, 0" % sG.t)
        e.raw("s_cselect_b32 %s, %s, 1" % (sT1.t, sW.t))
        e.raw("s_cmp_eq_u32 %s, 0" % sT1.t)
        e.raw("s_cbranch_scc0 L_no_nonce")
        e.raw("s_memrealtime s[90:91]")
        e.raw("s_waitcnt lgkmcnt(0)")
        e.salu("s_or_b32", S(90), S(90), 1)
        e.valu("v_mov_b32", T(14), S(90))
        e.valu("v_mov_b32", T(15), 0)
        e.raw("buffer_store_dword %s, %s, %s, 0 offen sc1" % (T(14).t, T(15).t, sDBG.t))
        e.label("L_no_nonce")
        e.salu("s_mov_b32", sONES, 0x3f803f80)
        e.salu("s_mov_b32", sTHR, THR)
        e.salu("s_mov_b32", sCS, CSCALE)
        if self.o["rot"]:
            e.salu("s_mov_b32", sR14, sROT)
            for lim in (28, 14):
                e.salu("s_sub_u32", sT1, sR14, lim)
                e.raw("s_cmp_ge_u32 %s, %d" % (sR14.t, lim))
                e.raw("s_cselect_b32 %s, %s, %s" % (sR14.t, sT1.t, sR14.t))
        else:
            e.salu("s_mov_b32", sR14, 0)
        e.valu("v_lshlrev_b32", vL16, 4, l)
        e.valu("v_add_u32", vL16H, LDS_H, vL16)
        e.valu("v_lshlrev_b32", a, 2, r4)
        e.valu("v_xor_b32", a, a, c16)
        e.valu("v_lshlrev_b32", a, 4, a)
        e.valu("v_lshl_add_u32", vDV, r4, 8, a)
        e.salu("s_lshl_b32", sT1, sW, 8)
        e.valu("v_lshl_add_u32", b, r4, 10, a)
        e.valu("v_add_u32", vDW[0], sT1, b)
        for p in range(1, 4):
            e.valu("v_add_u32", vDW[p], p * 3072, vDW[0])
        e.salu("s_lshl_b32", sT2, sG, 10)
        e.salu("s_add_u32", sT1, sT1, sT2)
        e.valu("v_lshl_add_u32", b, r4, 13, a)
        e.valu("v_add_u32", vDQ[0], sT1, b)
        for p in range(1, 4):
            e.valu("v_add_u32", vDQ[p], p * (32768 - 1024), vDQ[0])
        e.salu("s_lshl_b32", sT1, sW, 3)
        for p in range(2):
            e.valu("v_add_u32", b, sT1, r4)
            if p: e.valu("v_add_u32", b, 4, b)
            e.valu("v_and_b32", b, 15, b)
            e.valu("v_xor_b32", b, b, c16)
            e.valu("v_lshlrev_b32", b, 4, b)
            e.valu("v_lshl_add_u32", vDK[p], r4, 8, b)
        rr = T(13)
        e.valu("v_and_b32", g1, 1, r4)
        e.valu("v_lshrrev_b32", hh, 5, l)
        e.valu("v_bfe_u32", rr, l, 2, 2)
        e.valu("v_and_b32", c4, 3, l)
        e.valu("v_lshl_add_u32", a, hh, 2, rr)
        e.valu("v_lshlrev_b32", a, 8, a)
        e.valu("v_lshl_add_u32", a, g1, 5, a)
        e.valu("v_lshl_add_u32", b, c4, 3, a)
        for mb in range(4):
            e.valu("v_xor_b32", c, mb, rr)
            e.valu("v_lshl_add_u32", c, c, 6, b)
            e.valu("v_add_u32", vTC[mb], sRING, c)
            e.valu("v_add_u32", vTV[mb], LDS_KV, c)
        e.valu("v_lshl_add_u32", a, hh, 3, rr)
        e.valu("v_lshlrev_b32", a, 8, a)
        e.valu("v_lshl_add_u32", a, g1, 5, a)
        e.valu("v_lshrrev_b32", b, 1, c4)
        e.valu("v_and_b32", c, 1, c4)
        e.valu("v_lshl_or_b32", b, c, 1, b)
        e.valu("v_lshl_add_u32", b, b, 3, a)
        for mb in range(4):
            e.valu("v_xor_b32", c, mb, rr)
            e.valu("v_lshl_add_u32", c, c, 6, b)
            e.valu("v_add_u32", vTN[mb], sRING, c)
        e.valu("v_lshl_add_u32", a, hh, 3, rr)
        e.valu("v_lshlrev_b32", a, 7, a)
        e.valu("v_lshl_add_u32", a, g1, 11, a)
        e.valu("v_lshl_add_u32", a, c4, 3, a)
        e.valu("v_lshrrev_b32", b, 1, rr)
        e.valu("v_lshl_or_b32", b, g1, 1, b)
        for mb in range(4):
            e.valu("v_xor_b32", c, mb, b)
            e.valu("v_lshl_add_u32", c, c, 5, a)
            e.valu("v_add_u32", vTF[mb], sRING, c)
        e.valu("v_and_b32", a, 31, l)
        e.valu("v_and_b32", b, 15, l)
        e.valu("v_xor_b32", b, b, hh)
        e.valu("v_lshlrev_b32", b, 4, b)
        e.valu("v_lshlrev_b32", a, 8, a)
        e.valu("v_add_u32", a, LDS_KV, a)
        for ks in range(8):
            e.valu("v_xor_b32", c, ks * 32, b)
            e.valu("v_add_u32", vK[ks], a, c)
        e.salu("s_lshl_b32", sT1, sW, 14)
        e.salu("s_lshl_b32", sT2, sG, 11)
        e.salu("s_add_u32", sT1, sT1, sT2)
        e.valu("v_add_u32", vST, sT1, vL16)
        e.salu("s_lshl_b32", sT1, sFO, 6)
        e.valu("v_add_u32", vHW, sT1, vL16H)
        e.salu("s_add_u32", sT1, sT1, 2 * 2048)
        e.raw("s_cmp_eq_u32 %s, 1" % sSHORT.t)
        e.raw("s_cselect_b32 %s, %d, %s" % (sT1.t, 28 * 1024, sT1.t))
        e.valu("v_add_u32", vHW3, sT1, vL16H)
        xw = T(16)
        e.salu("s_lshr_b32", sT1, sW, 1)
        e.salu("s_lshl_b32", sT1, sT1, 10)
        e.salu("s_and_b32", sT2, sW, 1)
        e.salu("s_lshl_b32", sT2, sT2, 4)
        e.valu("v_lshrrev_b32", a, 2, l)
        e.valu("v_add_u32", a, sT2, a)
        e.valu("v_and_b32", b, 3, l)
        e.valu("v_lshrrev_b32", c, 1, b)
        e.valu("v_and_b32", b, 1, b)
        e.valu("v_lshlrev_b32", xw, 11, c)
        e.valu("v_lshl_add_u32", xw, b, 9, xw)
        e.valu("v_lshlrev_b32", c, 2, c)
        e.valu("v_lshl_or_b32", c, b, 1, c)
        e.valu("v_xor_b32", a, a, c)
        e.valu("v_lshl_add_u32", xw, a, 4, xw)
        e.valu("v_add_u32", xw, sT1, xw)
        e.valu("v_and_b32", a, 31, l)
        e.valu("v_lshlrev_b32", b, 1, hh)
        e.valu("v_xor_b32", a, a, b)
        e.valu("v_lshlrev_b32", a, 4, a)
        e.valu("v_lshl_add_u32", vLX, hh, 9, a)
        self.xw = xw
        pass
        if self.o.get("pstamp"):
            e.salu("s_lshl_b32", sT0, S(2), 2); e.salu("s_add_u32", sT0, sT0, sW); e.salu("s_lshl_b32", sT0, sT0, 7)
            e.valu("v_mov_b32", T(1), sT0)
            e.salu("s_add_u32", S(88), sWSP[0], WS_DBG); e.salu("s_addc_u32", S(89), sWSP[1], 0)
            e.salu("s_mov_b32", S(90), 1 << 20); e.salu("s_mov_b32", S(91), 0x20000)
            for i in range(len(self.pst)):
                e.buf_store(V(240 + i), T(1), S(88, 4), 0, 4 * (24 + i))
        self.layernorm()

    def layernorm(self):
        e = self.e
        x = lambda i: V(128 + 4 * i, 4)
        s1a, s1b, s2a, s2b = T(0), T(1), T(2), T(3)
        for r in (s1a, s1b, s2a, s2b): e.valu("v_mov_b32", r, 0)
        wd = self.o.get("wdelay")
        for i in range(16):
            if wd and i == wd:
                for t in range(self.o["depth"]):
                    for th in self.tile_issue(t): th()
            for k in range(4):
                xr = x(i)[k]
                e.valu("v_dot2_f32_bf16", s1a if k & 1 else s1b, xr, sONES, s1a if k & 1 else s1b)
                e.valu("v_dot2_f32_bf16", s2a if k & 1 else s2b, xr, xr, s2a if k & 1 else s2b)
        e.nop(3)
        e.valu("v_add_f32", s1a, s1a, s1b)
        e.valu("v_add_f32", s2a, s2a, s2b)
        for ctrl in ("quad_perm:[1,0,3,2] row_mask:0xf bank_mask:0xf", "quad_perm:[2,3,0,1] row_mask:0xf bank_mask:0xf"):
            e.dpp("v_add_f32_dpp", s1b, s1a, s1a, ctrl)
            e.dpp("v_add_f32_dpp", s2b, s2a, s2a, ctrl)
            s1a, s1b, s2a, s2b = s1b, s1a, s2b, s2a
        mean = T(4)
        rstd, shift = T(6, 2), T(8, 2)
        e.valu("v_mul_f32", mean, 1.0 / 512, s1a)
        e.valu("v_mul_f32", s2a, 1.0 / 512, s2a)
        e.valu("v_fma_f32", s2a, "-" + mean.t, mean, s2a)
        e.valu("v_max_f32", s2a, 0, s2a)
        e.valu("v_add_f32", s2a, 1e-5, s2a)
        e.valu("v_rsq_f32", rstd[0], s2a)
        e.valu("v_mul_f32", shift[0], mean, rstd[0])
        e.valu("v_sub_f32", shift[0], 0, shift[0])
        for i in range(16):
            xi = x(i)
            y = V(192 + 8 * (i & 1), 8)
            for k in range(4):
                e.valu("v_lshlrev_b32", y[2 * k], 16, xi[k])
                e.valu("v_and_b32", y[2 * k + 1], 0xffff0000, xi[k])
            for k in range(4):
                e.valu("v_pk_fma_f32", y.sub(2 * k, 2), y.sub(2 * k, 2), rstd, shift, suffix=" op_sel_hi:[1,0,0]")
            for k in range(4):
                e.valu("v_cvt_pk_bf16_f32", xi[k], y[2 * k], y[2 * k + 1])
            e.ds_write("ds_write_b128", self.xw, xi, i * 4096)
        e.wait_all(vm=False, lg=True)
        e.barrier()

    PH = [("F1", 32), ("Q", 32), ("F2", 14), ("O", 32)]
    def tile_info(self, T_):
        t = T_
        for ph, n in self.PH:
            if t < n: return ph, t, n
            t -= n
        return None
    def phase_T0(self, ph):
        t = 0
        for p, n in self.PH:
            if p == ph: return t
            t += n
    def tile_issue(self, T_):
        info = self.tile_info(T_)
        if info is None: return []
        e = self.e
        ph, s, n = info
        slot = T_ % 4
        toks = self.tiles.setdefault(T_, [])
        stride = {"F1": 16 * 3584, "Q": 16 * 8192, "F2": 16 * 1024, "O": 16 * 1024}[ph]
        th = []
        def m0(off): return TS(lambda: e.salu("s_add_u32", "m0", sRING, off))
        def d(vo, srd, off): return TM(lambda: toks.append(e.dma(vo, srd, sRUN, off)), 8)
        if s == 0:
            rot = sR14 if ph == "F2" else sROT
            if self.o["rot"]:
                sh = self.o["rotmul"]
                th.append(TS(lambda: e.salu("s_mul_i32", sRUN, rot, stride)))
            else: th.append(TS(lambda: e.salu("s_mov_b32", sRUN, 0)))
        if ph == "F1":
            th += [m0(slot * 4096), d(vDG[0], sWG, 0), d(vDG[1], sWG, 1024),
                   m0(slot * 4096 + 2048), d(vDU[0], sWU, 0), d(vDU[1], sWU, 1024)]
        else:
            srd, va = {"F2": (sWD, vDW), "Q": (sWQ, vDQ), "O": (sWO, vDW)}[ph]
            th += [m0(slot * 4096)] + [d(va[p], srd, p * 1024) for p in range(4)]
        if s + 1 < n:
            th.append(TS(lambda: e.salu("s_add_u32", sRUN, sRUN, stride)))
            tot = n * stride
            if tot & (tot - 1) == 0:
                th.append(TS(lambda: e.salu("s_and_b32", sRUN, sRUN, tot - 1)))
            else:
                def wrap():
                    e.raw("s_cmp_eq_u32 %s, 0x%x" % (sRUN.t, tot))
                    e.raw("s_cselect_b32 %s, 0, %s" % (sRUN.t, sRUN.t))
                th.append(TS(wrap, 8))
        return th

    def gemm(self, ph, nmb, accf, pre_steps=None, bgbudget=8, issue_limit=None, extra=None, gapx=None):
        e = self.e
        T0 = self.phase_T0(ph)
        n = dict(self.PH)[ph]
        depth = self.o["depth"]
        def a_reads(T_, buf):
            slot = T_ % 4
            th = []
            for mb in range(nmb):
                for j in range(2):
                    if ph == "F1": addr, off = vTF[mb], slot * 4096 + j * 512
                    elif ph == "Q": addr, off = vTN[mb], slot * 4096 + j * 1024
                    else: addr, off = vTC[mb], slot * 4096 + j * 2048
                    dst = Af(buf, mb).sub(2 * j, 2)
                    th.append(TM(lambda addr=addr, off=off, dst=dst: e.ds_read("ds_read_b64_tr_b16", dst, addr, off)))
            return th
        base = vL16H if ph == "F2" else vL16
        swz = ph in ("F1", "Q")
        def b_addr(s):
            th = []
            if s == 0:
                rot = sR14 if ph == "F2" else sROT
                if self.o["rot"]: th.append(TS(lambda: e.salu("s_lshl_b32", sBI, rot, 11)))
                else: th.append(TS(lambda: e.salu("s_mov_b32", sBI, 0)))
                if swz:
                    def ini():
                        e.salu("s_lshr_b32", sB2, sBI, 5)
                        e.salu("s_and_b32", sB2, sB2, 64)
                        e.salu("s_or_b32", sBI, sBI, sB2)
                    th.append(TS(ini, 12))
            else:
                th.append(TS(lambda: e.salu("s_add_u32", sBI, sBI, 2048)))
                if n == 32: th.append(TS(lambda: e.salu("s_and_b32", sBI, sBI, 0xffff)))
                else:
                    def wrap():
                        e.raw("s_cmp_eq_u32 %s, 0x%x" % (sBI.t, n * 2048))
                        e.raw("s_cselect_b32 %s, 0, %s" % (sBI.t, sBI.t))
                    th.append(TS(wrap, 8))
                if swz: th.append(TS(lambda: e.salu("s_xor_b32", sBI, sBI, 64)))
            if swz: th.append(Task(lambda: e.valu("v_xor_b32", vB, sBI, vLX)))
            else: th.append(Task(lambda: e.valu("v_add_u32", vB, sBI, base)))
            return th
        def b_reads(buf):
            return [TM(lambda nb=nb: e.ds_read("ds_read_b128", Bf(buf, nb), vB, nb * 1024)) for nb in range(2)]
        for th in b_addr(0): th()
        e.wait_tokens(self.tiles[T0])
        ar = a_reads(T0, 0); br = b_reads(0)
        for th in [ar[0], ar[1], br[0], br[1]] + ar[2:]: th()
        nm = nmb * 2
        for s in range(n):
            T_ = T0 + s
            buf = s & 1
            gaps = [[] for _ in range(nm)]
            if s + 1 < n:
                ar = a_reads(T_ + 1, buf ^ 1); br = b_reads(buf ^ 1)
                gaps[0] += b_addr(s + 1)
                gaps[0].insert(0, TS(lambda T1=T_ + 1: e.wait_tokens(self.tiles[T1])))
                if nm == 8:
                    plan = [[ar[0], ar[1]], [br[0], br[1]], [ar[2], ar[3]], [ar[4], ar[5]], [ar[6], ar[7]], [], [], []]
                elif nm == 4:
                    plan = [[ar[0], ar[1]], [br[0], br[1]], [ar[2], ar[3]], []]
                else: raise ValueError
                for k in range(nm): gaps[k] += plan[k]
            nxt = T_ + depth
            dm = self.tile_issue(nxt) if (issue_limit is None or nxt < issue_limit) else []
            if extra: dm = dm + extra(s)
            if dm:
                groups = []; cur = []
                for t in dm:
                    cur.append(t)
                    if t.k == "m": groups.append(cur); cur = []
                if cur:
                    if groups: groups[-1] += cur
                    else: groups.append(cur)
                if nm == 8: pos = [1, 3, 5, 7] if len(groups) <= 4 else [1, 2, 3, 4, 5, 6, 7, 7]
                else: pos = [0, 1, 2, 3]
                for j, gt in enumerate(groups): gaps[pos[min(j, len(pos) - 1)]] += gt
            if gapx:
                for kk_, tl in gapx(s).items():
                    if kk_ == 0: gaps[0] = tl + gaps[0]
                    else: gaps[kk_] += tl
            regs = []
            for mb in range(nmb): regs += Af(buf, mb).regs
            for nb in range(2): regs += Bf(buf, nb).regs
            e._need(regs)
            k = 0
            for mb in range(nmb):
                for nb in range(2):
                    c = 0 if s == 0 else accf(mb, nb)
                    e.mfma(accf(mb, nb), Af(buf, mb), Bf(buf, nb), c)
                    used = sum(t.c for t in gaps[k])
                    bgt = []
                    room = min(bgbudget, 24 - used - (4 if k == nm - 1 else 0))
                    has_v = any(t.k == "v" for t in gaps[k])
                    while self.bg and room >= self.bg[0].c:
                        if self.bg[0].k != "v" and (bgt or has_v): break
                        t = self.bg.popleft(); room -= t.c; bgt.append(t)
                    for t in gaps[k]:
                        if t.k != "v": t()
                    for t in bgt:
                        if t.k != "v": t()
                    for t in gaps[k]:
                        if t.k == "v": t()
                    for t in bgt:
                        if t.k == "v": t()
                    k += 1

    def f1_epilogue_tasks(self):
        e = self.e
        th = []
        for mb in range(4):
            for nb in range(2):
                a = accV(mb, nb)
                for k in range(8): th.append(Task(lambda a=a, k=k: e.valu("v_max_f32", a[k], 0, a[k])))
                for k in range(8): th.append(Task(lambda a=a, k=k: e.valu("v_mul_f32", a[k], a[k], a[8 + k])))
                d = T(0, 4) if (mb * 2 + nb) & 1 else T(4, 4)
                for k in range(4): th.append(Task(lambda a=a, k=k, d=d: e.valu("v_cvt_pk_bf16_f32", d[k], a[2 * k], a[2 * k + 1])))
                if mb < 2: th.append(Task(lambda d=d, mb=mb, nb=nb: e.ds_write("ds_write_b128", vHW, d, (2 * mb + nb) * 1024), 16, "w"))
                else: th.append(Task(lambda d=d, mb=mb, nb=nb: e.ds_write("ds_write_b128", vHW3, d, (2 * (mb - 2) + nb) * 1024), 16, "w"))
        return th
    def q_epilogue_tasks(self):
        e = self.e
        th = []
        n = 0
        for ks in range(8):
            for u in range(2):
                a = accA(ks >> 1, u)
                o = 8 * (ks & 1)
                y = [T(8 * (n & 1) + k) for k in range(8)]
                n += 1
                for k in range(8): th.append(Task(lambda a=a, k=k, y=y, o=o: e.accread(y[k], a[o + k])))
                for k in range(8): th.append(Task(lambda k=k, y=y: e.valu("v_mul_f32", y[k], sCS, y[k])))
                d = Qf(u, ks)
                for k in range(4): th.append(Task(lambda k=k, y=y, d=d: e.valu("v_cvt_pk_bf16_f32", d[k], y[2 * k], y[2 * k + 1])))
        return th
    def d_pack_tasks(self, mb):
        e = self.e
        th = []
        for nb in range(2):
            a = accV(mb, nb)
            for q in range(2):
                idx = (mb * 2 + nb) * 2 + q
                for k in range(4):
                    t = V(32 + 4 * (idx & 1) + k)
                    th.append(Task(lambda a=a, q=q, k=k, t=t: e.valu("v_cvt_pk_bf16_f32", t, a[8 * q + 2 * k], a[8 * q + 2 * k + 1])))
                for k in range(4):
                    t = V(32 + 4 * (idx & 1) + k)
                    th.append(Task(lambda idx=idx, k=k, t=t: e.accwrite(Dpk(idx)[k], t)))
        return th
    def d_store_tasks(self, idx):
        e = self.e
        th = []
        if idx % 2 == 0: th.append(TS(lambda: e.salu("s_mov_b32", sOFF2, (idx >> 1) * 65536)))
        th.append(TM(lambda: self.dtok.append(e.buf_store(Dpk(idx), vST, sPD, sOFF2, (idx & 1) * 1024, "sc1")), 8))
        return th
    def s_store(self):
        e = self.e
        n = 0
        toks = []
        for mb in range(4):
            for nb in range(2):
                a = accV(mb, nb)
                e.salu("s_mov_b32", sOFF2, (mb * 2 + nb) * 65536)
                for q in range(2):
                    d = T(4 * (n % 3), 4)
                    for k in range(4):
                        e.valu("v_cvt_pk_bf16_f32", d[k], a[8 * q + 2 * k], a[8 * q + 2 * k + 1])
                    toks.append(e.buf_store(d, vST, sPS, sOFF2, q * 1024, "sc1"))
                    n += 1
        return toks

    def nonce_issue(self):
        e = self.e
        return [Task(lambda: e.valu("v_mov_b32", vNO, 0)),
                TM(lambda: e.buf_load(vNO, vNO, sDBG, 0, 0, "sc1"), 8)]
    def nonce_get(self):
        e = self.e
        e.rdlane(sNON, vNO)
        e.raw("s_cmp_lg_u32 %s, 0" % sNON.t)
        e.raw("s_cbranch_scc1 L_nonce_ok")
        e.raw("s_call_b64 %s, L_spin_nonce" % sRET.t)
        e.label("L_nonce_ok")
    def flag_store(self, typ):
        e = self.e
        lab = "L_noflag_%d" % typ
        e.raw("s_cmp_eq_u32 %s, 0" % sW.t)
        e.raw("s_cbranch_scc0 %s" % lab)
        e.raw("s_lshl_b32 %s, %s, 2" % (sT0.t, sG.t))
        e.raw("s_add_u32 %s, %s, %d" % (sT0.t, sT0.t, typ * 128))
        e.raw("v_mov_b32 %s, %s" % (T(16).t, sT0.t))
        e.raw("v_mov_b32 %s, %s" % (vFL.t, sNON.t))
        e.raw("buffer_store_dword %s, %s, %s, 0 offen sc1" % (vFL.t, T(16).t, sFL.t))
        e.label(lab)
        e.nop(2)
    def flag_poll_issue(self, typ):
        e = self.e
        return TM(lambda: e.buf_load(vFL, vFO, sFL, 0, typ * 128, "sc1"), 8)
    def flag_check(self, typ):
        e = self.e
        lab = "L_flag_ok_%d" % typ
        e.cmp("v_cmp_ne_u32", "vcc", sNON, vFL)
        e.ins("s_cbranch_vccz", "salu", [], [lab], extra_uses=["vcc"])
        e.raw("s_call_b64 %s, L_spin_flag_%d" % (sRET.t, typ))
        e.label(lab)
    def spin_routines(self):
        e = self.e
        st = e.state()
        def reset():
            e.lastw, e.lastC, e.lastStore, e.pend = {}, {}, {}, {}
            e.lg, e.vm = [], []
        LIM = 1 << 18
        e.label("L_spin_nonce"); reset()
        e.raw("s_mov_b32 %s, 0" % sSPIN.t)
        e.label("L_spin_nonce_loop")
        e.raw("s_sleep 2")
        e.raw("v_mov_b32 %s, 0" % vNO.t)
        e.raw("s_nop 1")
        e.raw("buffer_load_dword %s, %s, %s, 0 offen sc1" % (vNO.t, vNO.t, sDBG.t))
        e.raw("s_waitcnt vmcnt(0)")
        e.raw("v_readfirstlane_b32 %s, %s" % (sNON.t, vNO.t))
        e.raw("s_add_u32 %s, %s, 1" % (sSPIN.t, sSPIN.t))
        e.raw("s_cmp_ge_u32 %s, %d" % (sSPIN.t, LIM))
        e.raw("s_cbranch_scc1 L_spin_nonce_out")
        e.raw("s_cmp_eq_u32 %s, 0" % sNON.t)
        e.raw("s_cbranch_scc1 L_spin_nonce_loop")
        e.label("L_spin_nonce_out")
        e.raw("s_nop 4")
        e.raw("s_setpc_b64 %s" % sRET.t)
        for typ in range(2):
            e.label("L_spin_flag_%d" % typ); reset()
            e.raw("s_mov_b32 %s, 0" % sSPIN.t)
            e.label("L_spin_flag_loop_%d" % typ)
            e.raw("s_sleep %d" % (16 if typ == 0 else 4))
            e.raw("buffer_load_dword %s, %s, %s, 0 offen offset:%d sc1" % (vFL.t, vFO.t, sFL.t, typ * 128))
            e.raw("s_waitcnt vmcnt(0)")
            e.raw("v_cmp_ne_u32 vcc, %s, %s" % (sNON.t, vFL.t))
            e.raw("s_add_u32 %s, %s, 1" % (sSPIN.t, sSPIN.t))
            e.raw("s_cmp_ge_u32 %s, %d" % (sSPIN.t, LIM))
            e.raw("s_cbranch_scc1 L_spin_flag_out_%d" % typ)
            e.raw("s_nop 2")
            e.raw("s_cbranch_vccnz L_spin_flag_loop_%d" % typ)
            e.label("L_spin_flag_out_%d" % typ)
            e.raw("s_nop 4")
            e.raw("s_setpc_b64 %s" % sRET.t)
        e.restore(st)

    def part_loads(self, srd, dstf):
        e = self.e
        th = []
        for j in range(16):
            if j % 4 == 0: th.append(TS(lambda j=j: e.salu("s_add_u32", sOFF2, sGC, (j // 4) * 4096)))
            th.append(TM(lambda j=j: e.buf_load(dstf(j), vCO, srd, sOFF2, (j % 4) * 1024, "sc1"), 8))
        return th
    def part_sum(self, srcf, accv, tmp, stage=None):
        e = self.e
        th = []
        for gp in range(8):
            for q in range(2):
                src = srcf(gp * 2 + q)
                if stage is not None:
                    st = stage[(gp * 2 + q) & 1]
                    for k in range(4): th.append(Task(lambda k=k, st=st, src=src: e.accread(st[k], src[k])))
                    src = st
                for k in range(4):
                    lo, hi = accv[8 * q + 2 * k], accv[8 * q + 2 * k + 1]
                    if gp == 0:
                        th.append(Task(lambda lo=lo, r=src[k]: e.valu("v_lshlrev_b32", lo, 16, r)))
                        th.append(Task(lambda hi=hi, r=src[k]: e.valu("v_and_b32", hi, 0xffff0000, r)))
                    else:
                        ta, tb = tmp[2 * (k & 1)], tmp[2 * (k & 1) + 1]
                        th.append(Task(lambda ta=ta, r=src[k]: e.valu("v_lshlrev_b32", ta, 16, r)))
                        th.append(Task(lambda tb=tb, r=src[k]: e.valu("v_and_b32", tb, 0xffff0000, r)))
                        th.append(Task(lambda lo=lo, ta=ta: e.valu("v_add_f32", lo, lo, ta)))
                        th.append(Task(lambda hi=hi, tb=tb: e.valu("v_add_f32", hi, hi, tb)))
        return th
    def silu_tasks(self, d, tmp):
        e = self.e
        th = []
        for k in range(16):
            t = tmp[k & 3]
            th.append(Task(lambda k=k, t=t: e.valu("v_mul_f32", t, sT2, d[k])))
            th.append(Task(lambda t=t: e.valu("v_exp_f32", t, t), 8))
            th.append(Task(lambda: None, 0))
        out = []
        for g0 in range(0, 16, 4):
            ks = range(g0, g0 + 4)
            for k in ks: out.append(Task(lambda k=k: e.valu("v_mul_f32", tmp[k & 3], sT2, d[k])))
            for k in ks: out.append(Task(lambda k=k: e.valu("v_exp_f32", tmp[k & 3], tmp[k & 3]), 8))
            for k in ks: out.append(Task(lambda k=k: e.valu("v_add_f32", tmp[k & 3], 1.0, tmp[k & 3])))
            for k in ks: out.append(Task(lambda k=k: e.valu("v_rcp_f32", tmp[k & 3], tmp[k & 3]), 8))
            for k in ks: out.append(Task(lambda k=k: e.valu("v_mul_f32", d[k], d[k], tmp[k & 3])))
        return out
    def consumer_setup(self):
        e = self.e
        l = vLANE
        e.valu("v_and_b32", vFO, 7, l)
        e.valu("v_lshlrev_b32", vFO, 2, vFO)
        e.salu("s_lshl_b32", sGC, sG, 16)
        e.salu("s_lshl_b32", sT0, sW, 14)
        e.valu("v_add_u32", vCO, sT0, vL16)
    def final_setup(self):
        e = self.e
        l = vLANE
        e.salu("s_lshl_b32", sT0, sRB, 6)
        e.salu("s_and_b32", sT1, sG, 1); e.salu("s_lshl_b32", sT1, sT1, 5)
        e.salu("s_add_u32", sT0, sT0, sT1)
        e.valu("v_and_b32", vXO, 31, l)
        e.valu("v_add_u32", vXO, sT0, vXO)
        e.valu("v_lshlrev_b32", vXO, 10, vXO)
        e.valu("v_lshrrev_b32", T(16), 5, l)
        e.valu("v_lshl_add_u32", vXO, T(16), 4, vXO)
        e.salu("s_lshl_b32", sT0, sW, 8)
        e.salu("s_lshr_b32", sT1, sG, 1); e.salu("s_lshl_b32", sT1, sT1, 6)
        e.salu("s_add_u32", sT0, sT0, sT1)
        e.valu("v_add_u32", vXO, sT0, vXO)
        e.salu("s_mov_b32", sT2, -math.log2(math.e))
        e.buf_load(vXR[0], vXO, sX, 0, 0)
        e.buf_load(vXR[1], vXO, sX, 0, 32)
    def o_phase_hooks(self):
        e = self.e
        def gapx(s):
            g = {}
            if s == 1:
                self.bg.extend(self.part_sum(Dpk, vGA, [T(0), T(1), T(2), T(3)], stage=[T(4, 4), T(8, 4)]))
                self.bg.extend(self.silu_tasks(vGA, [T(0), T(1), T(2), T(3)]))
            return g
        return gapx
    def final_combine(self, stoks):
        e = self.e
        e.wait_tokens(stoks)
        self.stamp("s_acked")
        e.barrier()
        self.flag_store(1)
        e.raw("s_cmp_eq_u32 %s, 0" % sW.t)
        e.raw("s_cbranch_scc0 L_s_polled")
        e.raw("s_call_b64 %s, L_spin_flag_1" % sRET.t)
        e.label("L_s_polled")
        e.barrier()
        self.stamp("s_flags")
        sf = lambda j: V(64 + 4 * j, 4)
        for t in self.part_loads(sPS, sf): t()
        if self.diag:
            e.wait_all(vm=True, lg=False)
            self.stamp("s_loaded")
        sacc = [V(128 + k) for k in range(16)]
        for t in self.part_sum(sf, sacc, [T(0), T(1), T(2), T(3)]): t()
        for k in range(16): e.valu("v_mul_f32", sacc[k], sacc[k], vGA[k])
        for q in range(2):
            t = sacc[8 * q:8 * q + 8]
            for k in range(4): e.perm("v_permlane32_swap_b32", t[k], t[4 + k])
            xr = vXR[q]
            o = V(148 + 4 * q, 4)
            for k in range(4):
                lo, hi = T(2 * (k & 1)), T(2 * (k & 1) + 1)
                e.valu("v_lshlrev_b32", lo, 16, xr[k])
                e.valu("v_and_b32", hi, 0xffff0000, xr[k])
                e.valu("v_add_f32", lo, lo, t[2 * k])
                e.valu("v_add_f32", hi, hi, t[2 * k + 1])
                e.valu("v_cvt_pk_bf16_f32", o[k], lo, hi)
            e.buf_store(o, vXO, sOUT, 0, q * 32)

    def kv_issue(self, kind, t):
        e = self.e
        toks = self.kvtok.setdefault((kind, t), [])
        base = LDS_KV + kvslot(t) + (8192 if kind == "V" else 0)
        so = sKO if kind == "K" else sVO
        th = [TS(lambda: e.salu("s_add_u32", "m0", sKVM, base))]
        for p in range(2):
            vo = vDK[p] if kind == "K" else vDV
            srd = sK if kind == "K" else sV
            th.append(TM(lambda vo=vo, srd=srd, p=p: toks.append(e.dma(vo, srd, so, p * 1024)), 8))
        th.append(TS(lambda: e.salu("s_add_u32", so, so, 8192)))
        th.append(TS(lambda: e.salu("s_and_b32", so, so, 0x1ffff)))
        return th
    def kv_setup(self):
        e = self.e
        self.kvtok = {}
        self.dtok = []
        self.dloads = self.part_loads(sPD, Dpk)
        e.salu("s_lshl_b32", sKVM, sW, 11)
        if self.o["rot"]:
            e.salu("s_lshr_b32", sKO, sROT, 1)
            e.salu("s_lshl_b32", sKO, sKO, 13)
            e.salu("s_add_u32", sKO, sKO, sKVM)
        else:
            e.salu("s_mov_b32", sKO, sKVM)
        e.salu("s_mov_b32", sVO, sKO)
    def k_reads(self, t, kf=Kf):
        e = self.e
        return [TM(lambda ks=ks: e.ds_read("ds_read_b128", kf(ks), vK[ks], kvslot(t))) for ks in range(8)]
    def v_reads(self, t):
        e = self.e
        th = []
        for kk in range(2):
            for mb in range(4):
                for j in range(2):
                    th.append(TM(lambda kk=kk, mb=mb, j=j: e.ds_read("ds_read_b64_tr_b16", Vf(kk, mb).sub(2 * j, 2), vTV[mb],
                                                                       kvslot(t) + 8192 + kk * 4096 + j * 2048)))
        return th
    def qk_mfmas(self, t, czero=False, kf=Kf):
        e = self.e
        p = t & 1
        th = []
        for ks in range(8):
            for u in range(2):
                c = (0 if czero else NEG(u)) if ks == 0 else Sb(p, u)
                th.append(lambda ks=ks, u=u, c=c: e.mfma(Sb(p, u), kf(ks), Qf(u, ks), c))
        return th
    def pv_mfmas(self, t):
        e = self.e
        p = t & 1
        th = []
        for kk in range(2):
            for mb in range(4):
                for u in range(2):
                    c = 0 if (t == 0 and kk == 0) else Oacc(mb, u)
                    th.append(lambda kk=kk, mb=mb, u=u, c=c: e.mfma(Oacc(mb, u), Vf(kk, mb), Pf(p, u, kk), c))
        return th
    def sm_ops(self, t, sub=None, split=False):
        e = self.e
        p = t & 1
        pairs = []
        for kk in range(2):
            for u in range(2):
                for k2 in range(4): pairs.append((kk, u, k2))
        th = []
        def exps(n):
            kk, u, k2 = pairs[n]
            s = Sb(p, u); r0 = 8 * kk + 2 * k2
            ea, eb = vE[(2 * n) % 12], vE[(2 * n + 1) % 12]
            o = []
            if sub is not None:
                o.append(Task(lambda: e.valu("v_sub_f32", s[r0], s[r0], sub[u])))
                o.append(Task(lambda: e.valu("v_sub_f32", s[r0 + 1], s[r0 + 1], sub[u])))
            o.append(Task(lambda: e.valu("v_exp_f32", ea, s[r0]), 8))
            o.append(Task(lambda: e.valu("v_exp_f32", eb, s[r0 + 1]), 8))
            return o
        def post(n):
            kk, u, k2 = pairs[n]
            ea, eb = vE[(2 * n) % 12], vE[(2 * n + 1) % 12]
            o = []
            if kk == 0 and k2 == 0:
                o.append(Task(lambda: e.valu("v_add_f32", vTS[u], ea, eb)))
            else:
                o.append(Task(lambda: e.valu("v_add_f32", vTS[u], vTS[u], ea)))
                o.append(Task(lambda: e.valu("v_add_f32", vTS[u], vTS[u], eb)))
            o.append(Task(lambda: e.valu("v_cvt_pk_bf16_f32", Pf(p, u, kk)[k2], ea, eb)))
            return o
        if split:
            h0 = exps(0)
            for n in range(1, 8): h0 += exps(n) + post(n - 1)
            h0 += post(7)
            h1 = exps(8)
            for n in range(9, 16): h1 += exps(n) + post(n - 1)
            h1 += post(15)
            return h0, h1
        th += exps(0)
        for n in range(1, 16):
            th += exps(n); th += post(n - 1)
        th += post(15)
        return th
    def sm_check(self, t, mid=None):
        e = self.e
        p = t & 1
        e.valu("v_max_f32", vE[0], vTS[0], vTS[1])
        e.cmp("v_cmp_nge_f32", "vcc", sTHR, vE[0])
        if mid: mid()
        lab = "L_ok_%d" % t
        e.ins("s_cbranch_vccz", "salu", [], [lab], extra_uses=["vcc"])
        e.raw("s_call_b64 %s, L_slow_%d" % (sRET.t, p))
        e.label(lab)
    def rowmax(self, p, dst):
        e = self.e
        for u in range(2):
            s = Sb(p, u)
            e.valu("v_max3_f32", dst[u], s[0], s[1], s[2])
            for k in range(3, 15, 2):
                e.valu("v_max3_f32", dst[u], dst[u], s[k], s[k + 1])
            e.valu("v_max_f32", dst[u], dst[u], s[15])
        e.perm("v_permlane32_swap_b32", dst[0], dst[1])
        e.valu("v_max_f32", dst[0], dst[0], dst[1])
        e.valu("v_mov_b32", dst[1], dst[0])
        e.perm("v_permlane32_swap_b32", dst[0], dst[1])
    def slow_path(self, p):
        e = self.e
        st = e.state()
        e.label("L_slow_%d" % p)
        e.lastw, e.lastC, e.lastStore, e.pend = {}, {}, {}, {}
        e.lg, e.vm = [], []
        e.raw("s_waitcnt lgkmcnt(0)")
        e.nop(24)
        dl = [vE[0], vE[1]]; al = [vE[2], vE[3]]; tm = vE[4]
        self.rowmax(p, dl)
        for u in range(2):
            e.valu("v_max_f32", dl[u], 0, dl[u])
            e.valu("v_exp_f32", al[u], "-" + dl[u].t)
            for r in range(16):
                e.valu("v_sub_f32", NEG(u)[r], NEG(u)[r], dl[u])
                e.valu("v_sub_f32", Sb(p, u)[r], Sb(p, u)[r], dl[u])
                e.valu("v_sub_f32", Sb(p ^ 1, u)[r], Sb(p ^ 1, u)[r], dl[u])
            e.valu("v_mul_f32", vL[u], vL[u], al[u])
            for mb in range(4):
                for r in range(16):
                    e.accread(tm, Oacc(mb, u)[r])
                    e.valu("v_mul_f32", tm, tm, al[u])
                    e.accwrite(Oacc(mb, u)[r], tm)
        for th in self.sm_ops(p): th()
        e.nop(8)
        e.raw("s_setpc_b64 %s" % sRET.t)
        e.restore(st)

    def pack(self, mf, fixed, flow, lo=0, cap=24, hi=None):
        ng = len(mf)
        if hi is None: hi = ng - 1
        flow = deque((t if isinstance(t, tuple) else (t, ng + 1)) for t in flow)
        used = [sum(t.c for t in fixed[k]) for k in range(ng)]
        total = sum(t.c for t, _ in flow)
        room = sum(max(0, cap - used[k]) for k in range(lo, hi + 1))
        ratio = total / room if room else 1.0
        target = 0.0; done = 0
        for k in range(ng):
            while flow and flow[0][1] <= k:
                t, _ = flow.popleft(); done += t.c; t()
            mf[k]()
            pre = [t for t in fixed[k] if t.k != "v"]
            post = [t for t in fixed[k] if t.k == "v"]
            got = []
            if lo <= k <= hi:
                r = max(0, cap - used[k])
                target = max(target, done) if ratio > 1 else target
                target += r * min(ratio, 1.0) if ratio <= 1 else r
                while flow and (k == hi or (done + flow[0][0].c <= target + 2 and flow[0][0].c <= r)):
                    if flow[0][0].k != "v" and (got or post): break
                    t, _ = flow.popleft(); done += t.c; r -= t.c; got.append(t)
            for t in pre: t()
            for t in [x for x in got if x.k != "v"]: t()
            for t in post: t()
            for t in [x for x in got if x.k == "v"]: t()
        while flow: flow.popleft()[0]()

    def f2_extra(self):
        e = self.e
        tok = self.kvtok
        kvpre = self.kv_issue("K", 0) + self.kv_issue("V", 0) + self.kv_issue("K", 1) + self.kv_issue("V", 1)
        def extra(s):
            if s < 4: return kvpre[5 * s:5 * s + 5]
            return []
        def gapx(s):
            g = {}
            if s == 10:
                g[0] = [TS(lambda: (e.wait_tokens(tok[("K", 0)] + tok[("K", 1)] + tok[("V", 0)] + tok[("V", 1)]), e.barrier()), 8)]
            if s == 12:
                kr = self.k_reads(0)
                for j in range(8): g.setdefault(5 + j // 3, []).append(kr[j])
            if s == 13:
                g[0] = [TS(lambda: e.barrier())]
                kr = self.k_reads(1, Kf1); vr = self.v_reads(0)
                rd = kr + vr
                for j, t in enumerate(rd): g.setdefault((j * 8) // len(rd), []).append(t)
                dp = self.d_pack_tasks(0)
                for j, t in enumerate(dp): g.setdefault(4 + (j * 4) // len(dp), []).append(t)
            return g
        return extra, gapx

    def iter_fixed(self, i, base, fixed, ng, pend_l, T0):
        e = self.e
        tok = self.kvtok
        need = tok.get(("K", i + 2), []) + tok.get(("V", i + 1), [])
        if "b" in self.o.get("ablate", ""): fixed[base].append(TS(lambda need=need: e.wait_tokens(need), 4))
        else: fixed[base].append(TS(lambda need=need: (e.wait_tokens(need), e.barrier()), 8))
        fixed[base] += pend_l
        dm = []
        if i + 4 < 16: dm += self.kv_issue("K", i + 4)
        if i + 3 < 16: dm += self.kv_issue("V", i + 3)
        ab = self.o.get("ablate", "")
        if "K" in ab: dm = [t for t in dm if t.k != "m"]
        if "M" in ab: dm = [t for t in dm if t.k == "m"]
        if i < 8 and "S" not in ab: dm += self.d_store_tasks(2 * i) + self.d_store_tasks(2 * i + 1)
        if i == 5: dm += self.nonce_issue()[1:]
        if i == 11: dm += [self.flag_poll_issue(0)]
        if 12 <= i < 16: dm += self.dloads[5 * (i - 12):5 * (i - 11)]
        if 8 <= i < 8 + self.o["depth"]: dm += self.tile_issue(T0 + i - 8)
        full = (ng - base) == 32
        vr = None
        if i + 2 < 16:
            for k, th in enumerate(self.k_reads(i + 2)): fixed[base + 1 + k].append(th)
            kregs = []
            for ks in range(8): kregs += Kf(ks).regs
            fixed[base + 15].append(TS(lambda kregs=kregs: e._need(kregs)))
        if i + 1 < 16:
            vr = self.v_reads(i + 1)
            if full:
                for k, th in enumerate(vr): fixed[base + 16 + (k * 12) // 16].append(th)
                vr = None
        order = self.o.get("vorder", [9, 12, 15, 18, 21, 24, 27, 29, 31, 31]) if full else [1, 3, 5, 7, 9, 11, 13, 14, 15, 15]
        groups = []; cur = []
        for t in dm:
            cur.append(t)
            if t.k == "m": groups.append(cur); cur = []
        if cur:
            if groups: groups[-1] += cur
            else: groups.append(cur)
        for j, gtasks in enumerate(groups):
            fixed[base + order[min(len(order) - 1, j)]] += gtasks
        return vr

    def att_main(self):
        e = self.e
        tok = self.kvtok
        pass
        self.flush_bg()
        self.consumer_setup()
        dl = vDL
        T0 = self.phase_T0("O")
        vregs = []
        for kk in range(2):
            for mb in range(4): vregs += Vf(kk, mb).regs
        mf = self.qk_mfmas(0, czero=True)
        fixed = [[] for _ in mf]
        dm = self.kv_issue("K", 2) + self.kv_issue("V", 2) + self.kv_issue("K", 3)
        for j, t in enumerate(dm): fixed[1 + (j * 14) // len(dm)].append(t)
        self.pack(mf, fixed, self.d_pack_tasks(1) + self.d_pack_tasks(2) + self.d_pack_tasks(3))
        pass
        mf = self.qk_mfmas(1, czero=True, kf=Kf1) + self.pv_mfmas(0) + self.qk_mfmas(2)
        ng = len(mf)
        fixed = [[] for _ in mf]
        fixed[2].append(Task(lambda: self.rowmax(0, dl), 104))
        h0, h1 = self.sm_ops(0, sub=dl, split=True)
        flow = [(t, 16) for t in h0] + [(t, 24) for t in h1]
        flow += [(Task(lambda u=u: e.valu("v_mov_b32", vL[u], vTS[u])), 30) for u in range(2)]
        for u in range(2):
            for r in range(16): flow.append((Task(lambda u=u, r=r: e.valu("v_sub_f32", NEG(u)[r], 0, dl[u])), 32))
        flow += self.sm_ops(1, sub=dl)
        self.iter_fixed(0, 16, fixed, ng, [], T0)
        self.pack(mf, fixed, flow, lo=3, hi=ng - 2)
        self.sm_check(1, mid=lambda: e._need(vregs))
        pend_l = [Task(lambda u=u: e.valu("v_add_f32", vL[u], vL[u], vTS[u])) for u in range(2)]
        for i in range(1, 16):
            e.comment("---- attention iteration %d" % i)
            if i in (2, 3, 4, 6, 8): self.stamp("att_it%d" % i)
            mf = self.pv_mfmas(i) + (self.qk_mfmas(i + 2) if i + 2 < 16 else [])
            ng = len(mf)
            fixed = [[] for _ in mf]
            e._need(vregs)
            if i == 5: e.valu("v_mov_b32", vNO, 0)
            if i == 8: self.nonce_get()
            if i == 9: e.wait_tokens(self.dtok)
            if i == 10: self.flag_store(0)
            if i == 12: self.flag_check(0)
            vr = self.iter_fixed(i, 0, fixed, ng, pend_l, T0)
            flow = self.sm_ops(i + 1) if i + 1 < 16 else []
            ab = self.o.get("ablate", "")
            if "s" in ab: flow = []
            if "e" in ab: flow = [t for t in flow if t.c != 8]
            if "r" in ab: fixed = [[t for t in g if not (t.k == "m" and t.c == 4)] for g in fixed]
            if "d" in ab: fixed = [[t for t in g if not (t.k == "m" and t.c == 8)] for g in fixed]
            self.pack(mf, fixed, flow, lo=self.o.get("smlo", 1), hi=ng - 2, cap=self.o.get("cap", 24))
            if vr:
                for th in vr: th()
            if i + 1 < 16:
                self.sm_check(i + 1, mid=lambda: e._need(vregs))
                pend_l = [Task(lambda u=u: e.valu("v_add_f32", vL[u], vL[u], vTS[u])) for u in range(2)]
            else: pend_l = []

    def att_epilogue(self):
        e = self.e
        e.perm("v_permlane32_swap_b32", vL[0], vL[1])
        e.valu("v_add_f32", vL[0], vL[0], vL[1])
        e.valu("v_mov_b32", vL[1], vL[0])
        e.perm("v_permlane32_swap_b32", vL[0], vL[1])
        for u in range(2): e.valu("v_rcp_f32", vL[u], vL[u])
        ow = vE[0]
        e.salu("s_lshl_b32", sT0, sW, 14)
        e.valu("v_add_u32", ow, sT0, vL16)
        n = 0
        for ks in range(8):
            for u in range(2):
                o = Oacc(ks >> 1, u).sub(8 * (ks & 1), 8)
                y = [V(128 + (n & 1) * 8 + k) for k in range(8)]
                d = V(144 + (n & 1) * 4, 4)
                for k in range(8): e.accread(y[k], o[k])
                for k in range(8): e.valu("v_mul_f32", y[k], y[k], vL[u])
                for k in range(4): e.valu("v_cvt_pk_bf16_f32", d[k], y[2 * k], y[2 * k + 1])
                e.ds_write("ds_write_b128", ow, d, (2 * ks + u) * 1024)
                n += 1
        e.wait_all(vm=False, lg=True)
        e.barrier()

    def main_kernel(self):
        e = self.e
        e.label("main_kernel")
        self.stamp("start") if False else None
        self.prologue()
        self.stamp("ln_done")
        st = e.state(); tiles0 = {k: list(v) for k, v in self.tiles.items()}
        e.raw("s_cmp_eq_u32 %s, 1" % sSHORT.t)
        e.raw("s_cbranch_scc1 L_f1b")
        self.gemm("F1", 4, accV)
        e.wait_all(vm=False, lg=True)
        vm_a = len(e.vm)
        e.raw("s_branch L_f1_join")
        e.restore(st); self.tiles = tiles0
        e.label("L_f1b")
        self.gemm("F1", 2, accV)
        e.wait_all(vm=False, lg=True)
        assert len(e.vm) == vm_a, (len(e.vm), vm_a)
        e.label("L_f1_join")
        e.lastw, e.lastC, e.lastStore = {}, {}, {}
        e.nop(12)
        self.stamp("f1")
        if self.o["bg"]: self.bg.extend(self.f1_epilogue_tasks())
        else:
            for t in self.f1_epilogue_tasks(): t()
        self.gemm("Q", 4, accA)
        self.flush_bg()
        self.kv_setup()
        self.stamp("q")
        e.wait_all(vm=False, lg=True)
        e.barrier()
        if self.o["bg"]: self.bg.extend(self.q_epilogue_tasks())
        else:
            for t in self.q_epilogue_tasks(): t()
        extra, gapx = self.f2_extra()
        self.gemm("F2", 4, accV, issue_limit=self.phase_T0("O"), extra=extra, gapx=gapx, bgbudget=16)
        self.stamp("f2")
        self.flush_bg()
        pass
        self.att_main()
        self.stamp("att_main")
        self.att_epilogue()
        FR[0] = 192
        self.final_setup()
        self.stamp("att_done")
        self.gemm("O", 4, accV, gapx=self.o_phase_hooks(), bgbudget=12)
        self.flush_bg()
        self.stamp("o_gemm")
        stoks = self.s_store()
        self.stamp("s_issue")
        self.final_combine(stoks)
        e.wait_all(vm=True, lg=True)
        self.stamp("end")
        if self.diag: self.write_stamps()
        if self.o.get("calib"):
            e.raw("s_mov_b32 s44, %d" % self.o["calib"])
            e.label("L_calib")
            for k in range(16): e.raw("v_mfma_f32_32x32x16_bf16 a[0:15], a[192:195], v[64:67], a[0:15]")
            e.raw("s_sub_u32 s44, s44, 1")
            e.raw("s_cmp_lg_u32 s44, 0")
            e.raw("s_cbranch_scc1 L_calib")
        e.label("L_end")
        e.raw("s_endpgm")
        self.slow_path(0)
        self.slow_path(1)
        self.spin_routines()

    def write_stamps(self):
        e = self.e
        e.raw("s_waitcnt lgkmcnt(0)")
        e.salu("s_add_u32", S(4), sWSP[0], WS_DBG); e.salu("s_addc_u32", S(5), sWSP[1], 0)
        e.salu("s_mov_b32", S(6), 1 << 20); e.salu("s_mov_b32", S(7), 0x20000)
        e.salu("s_lshl_b32", sT0, sRB, 3); e.salu("s_add_u32", sT0, sT0, sG)
        e.salu("s_lshl_b32", sT0, sT0, 2); e.salu("s_add_u32", sT0, sT0, sW); e.salu("s_lshl_b32", sT0, sT0, 7)
        e.valu("v_mov_b32", T(1), sT0)
        for i in range(self.nstamp):
            e.valu("v_mov_b32", T(0), S(STAMP0 + (2 * i if self.o.get("stamps") == "att" else i)))
            e.buf_store(T(0), T(1), S(4, 4), 0, 4 * i)
        e.raw("s_memrealtime s[90:91]")
        e.raw("s_waitcnt lgkmcnt(0)")
        for i, r in enumerate((S(92), S(90), S(93))):
            e.valu("v_mov_b32", T(0), r)
            e.buf_store(T(0), T(1), S(4, 4), 0, 4 * (29 + i))
        e.wait_all()

from gen import kd
KNAME = NAME + "_kernel"
HEADER = """; Fused LayerNorm + ReGLU FFN + sliding-window GQA attention + gated residual (gfx950), one launch.
; @launch grid=(256,1,1) block=(256,1,1) lds=163840
.amdgcn_target "amdgcn-amd-amdhsa--gfx950"
.text
"""
def build(diag=False, opt=None):
    g = Gen(diag=diag, opt=opt)
    g.main_kernel()
    main = g.e.text().replace("main_kernel:", KNAME + ":")
    stats = dict(g.e.stats)
    names = g.stamp_names
    s = HEADER
    s += ".globl %s\n.p2align 8\n.type %s,@function\n" % (KNAME, KNAME) + main
    s += '.section .rodata,"a"\n.p2align 6\n' + kd(KNAME, 512, 256)
    return s, stats, names

if __name__ == "__main__":
    diag = "--diag" in sys.argv
    opt = {}
    for a in sys.argv[1:]:
        if a.startswith("--") and "=" in a:
            k, v = a[2:].split("=")
            opt[k] = {"True": True, "False": False}.get(v, int(v) if v.lstrip("-").isdigit() else v)
    out = [a for a in sys.argv[1:] if not a.startswith("--")]
    s, stats, names = build(diag, opt)
    path = out[0] if out else "cdna_kernels/%s.s" % NAME
    open(path, "w").write(s)
    print(path, len(s), "bytes", stats, names)
```
